```python
import torch

def _softmax(x, axis=-1):
    return torch.softmax(x, dim=axis)
def _gelu(x):
    return torch.nn.functional.gelu(x, approximate="tanh")
def _silu(x):
    return torch.nn.functional.silu(x)
def _sigmoid(x):
    return torch.sigmoid(x)
def _layernorm(x, axis=-1, eps=1e-5):
    m = x.mean(dim=axis, keepdim=True)
    v = x.var(dim=axis, keepdim=True, unbiased=False)
    return (x - m) / torch.sqrt(v + eps)
def _scatter_add(tgt, idx, src, axis=0):
    return tgt.clone().index_add_(axis, idx, src)
def _segment_sum(src, seg, n):
    out = torch.zeros((n,) + src.shape[1:], dtype=src.dtype)
    return out.index_add_(0, seg, src)
def _pad(x, pw):
    flat = tuple(v for pair in reversed(pw) for v in pair)
    return torch.nn.functional.pad(x, flat)

kernel_name = 'standalone__modern_conv_block_convnext__vision'

def setup_inputs():

    _w = (lambda a: (lambda t: t.to(torch.bfloat16) if t.is_floating_point() else t)(torch.as_tensor(a)))
    H = W = 512
    C = 96
    K = 3
    return {
        "x": _w((lambda *s: torch.randn(*s, dtype=torch.bfloat16) * 0.05)(1, H, W, C)),
        "dw": _w((lambda *s: torch.randn(*s, dtype=torch.bfloat16) * 0.05)(K, K, C)),
        "w1": _w((lambda *s: torch.randn(*s, dtype=torch.bfloat16) * 0.05)(C, 4 * C)),
        "b1": _w((lambda *s: torch.randn(*s, dtype=torch.bfloat16) * 0.2)(4 * C)),
        "w2": _w((lambda *s: torch.randn(*s, dtype=torch.bfloat16) * 0.05)(4 * C, C)),
        "b2": _w((lambda *s: torch.randn(*s, dtype=torch.bfloat16) * 0.2)(C)),
        "gamma": _w((lambda *s: torch.randn(*s, dtype=torch.bfloat16) * 0.05)(C)),
    }

def reference(x, dw, w1, b1, w2, b2, gamma):
    B, H, W, C = x.shape
    K = dw.shape[0]
    pad = K // 2
    xp = _pad(x, ((0,0),(pad,pad),(pad,pad),(0,0)))
    out = torch.zeros_like(x)
    for i in range(K):
        for j in range(K):
            out = out + xp[:, i:i+H, j:j+W, :] * dw[i, j][None, None, None, :]
    h = _layernorm(out, axis=-1)
    h = torch.einsum('bhwc,ce->bhwe', h, w1) + b1
    h = _gelu(h)
    h = torch.einsum('bhwe,ec->bhwc', h, w2) + b2
    return x + gamma[None, None, None, :] * h
```

```python
import struct

class R:
    __slots__ = ('k', 'i', 'n')
    def __init__(s, k, i, n=1):
        s.k, s.i, s.n = k, i, n
    def __getitem__(s, idx):
        if isinstance(idx, slice):
            a = idx.start or 0
            b = s.n if idx.stop is None else idx.stop
            assert 0 <= a < b <= s.n, (s, idx)
            return R(s.k, s.i + a, b - a)
        assert 0 <= idx < s.n, (s, idx)
        return R(s.k, s.i + idx, 1)
    def __str__(s):
        if s.k in ('vcc', 'exec', 'm0', 'scc'):
            return s.k
        return f"{s.k}{s.i}" if s.n == 1 else f"{s.k}[{s.i}:{s.i+s.n-1}]"
    __repr__ = __str__
    def regs(s):
        if s.k in ('vcc', 'exec', 'm0', 'scc'):
            return [(s.k, 0)]
        return [(s.k, s.i + j) for j in range(s.n)]

def V(i, n=1): return R('v', i, n)
def A(i, n=1): return R('a', i, n)
def S(i, n=1): return R('s', i, n)
VCC = R('vcc', 0, 2); EXEC = R('exec', 0, 2); M0 = R('m0', 0, 1); SCC = R('scc', 0, 1)

def f2u(f): return struct.unpack('<I', struct.pack('<f', f))[0]

class F:
    def __init__(s, v): s.v = v
    def __str__(s):
        if s.v in (0.5, -0.5, 1.0, -1.0, 2.0, -2.0, 4.0, -4.0): return repr(s.v)
        if s.v == 0.0: return '0'
        return hex(f2u(s.v))
    def bits(s): return f2u(s.v)

def opstr(o):
    if isinstance(o, int):
        if -16 <= o <= 64: return str(o)
        return hex(o & 0xffffffff)
    return str(o)

class Inst:
    __slots__ = ('op', 'dst', 'src', 'mods', 'cls', 'rd', 'wr', 'text', 'note', 'tag')
    def __init__(s, op, dst, src, cls, mods=None, text=None, xrd=(), xwr=(), note=None):
        s.op, s.dst, s.src, s.cls, s.mods = op, dst, src, cls, (mods or {})
        s.rd = set(); s.wr = set()
        for o in src:
            if isinstance(o, R): s.rd.update(o.regs())
        for o in dst:
            if isinstance(o, R): s.wr.update(o.regs())
        for o in xrd: s.rd.update(o.regs())
        for o in xwr: s.wr.update(o.regs())
        s.text = text
        s.note = note
        s.tag = None
    def __str__(s):
        return s.text + (f"  ; {s.note}" if s.note else "")

TRANS = {'v_exp_f32', 'v_rcp_f32', 'v_rsq_f32', 'v_log_f32', 'v_sqrt_f32'}

class Prog:
    def __init__(s):
        s.ins = []
    def add(s, i):
        s.ins.append(i); return i
    def extend(s, l):
        for i in l: s.add(i)

def _t(op, *ops, tail=''):
    return f"  {op} " + ", ".join(opstr(o) for o in ops) + (" " + tail if tail else "")

def salu(op, d, *src, scc=None):
    xwr = []
    if op in ('s_add_u32', 's_sub_u32', 's_and_b32', 's_or_b32', 's_lshl_b32', 's_lshr_b32', 's_addc_u32',
              's_and_b64', 's_or_b64', 's_xor_b32', 's_min_u32', 's_max_u32', 's_add_i32', 's_sub_i32', 's_bfe_u32'):
        xwr.append(SCC)
    xrd = [SCC] if op in ('s_cselect_b32', 's_addc_u32', 's_cselect_b64') else []
    return Inst(op, [d], list(src), 'salu', text=_t(op, d, *src), xrd=xrd, xwr=xwr)

def scmp(op, a, b):
    return Inst(op, [], [a, b], 'salu', text=_t(op, a, b), xwr=[SCC])

def sload(d, base, off):
    op = {1: 's_load_dword', 2: 's_load_dwordx2', 4: 's_load_dwordx4', 8: 's_load_dwordx8', 16: 's_load_dwordx16'}[d.n]
    return Inst(op, [d], [base, off], 'smem', text=_t(op, d, base, off))

def label(name): return Inst('label', [], [name], 'label', text=f"{name}:")
def branch(op, name):
    return Inst(op, [], [name], 'branch', text=f"  {op} {name}", xrd=[SCC] if 'scc' in op else [])
def nop(n): return Inst('s_nop', [], [n], 'nop', text=f"  s_nop {n}")
def barrier(): return Inst('s_barrier', [], [], 'barrier', text="  s_barrier")
def endpgm(): return Inst('s_endpgm', [], [], 'end', text="  s_endpgm")
def raw(text): return Inst('raw', [], [], 'raw', text=text)
def setprio(n): return Inst('s_setprio', [], [n], 'salu', text=f"  s_setprio {n}")
def waitcnt(lgkm=None, vm=None):
    parts = []
    if vm is not None: parts.append(f"vmcnt({vm})")
    if lgkm is not None: parts.append(f"lgkmcnt({lgkm})")
    return Inst('s_waitcnt', [], [], 'wait', mods={'lgkm': lgkm, 'vm': vm}, text="  s_waitcnt " + " ".join(parts))
def wait_for(*regs):
    i = Inst('wait_for', [], list(regs), 'pseudo', text="  ; wait_for " + " ".join(map(str, regs)))
    return i
def wait_tag(tag):
    i = Inst('wait_tag', [], [], 'pseudo', mods={'tag': tag}, text=f"  ; wait_tag {tag}")
    return i

def valu(op, d, *src, tail='', cls=None):
    c = cls or ('trans' if op in TRANS else 'valu')
    xrd = []; xwr = []
    if op == 'v_cndmask_b32' and len(src) == 2:
        xrd.append(VCC)
        return Inst(op, [d], list(src), c, text=_t(op, d, *src, 'vcc'), xrd=xrd)
    if op in ('v_fmac_f32',):
        xrd.append(d)
    return Inst(op, [d], list(src), c, mods={'tail': tail}, text=_t(op, d, *src, tail=tail), xrd=xrd, xwr=xwr)

def vcmp(op, a, b, d=VCC):
    return Inst(op, [d], [a, b], 'valu', text=_t(op, d, a, b))

def rfl(d, s): return Inst('v_readfirstlane_b32', [d], [s], 'valu', text=_t('v_readfirstlane_b32', d, s))

def permswap(a, b):
    return Inst('v_permlane32_swap_b32', [a, b], [a, b], 'perm', text=_t('v_permlane32_swap_b32', a, b))

def pk(op, d, *src, neg=None, bcast=None):
    n = len(src)
    tail = ''
    if bcast and any(bcast):
        tail += " op_sel_hi:[" + ",".join('0' if b else '1' for b in bcast) + "]"
    if neg and any(neg):
        t = "[" + ",".join('1' if b else '0' for b in neg) + "]"
        tail += f" neg_lo:{t} neg_hi:{t}"
    ins = Inst(op, [d], list(src), 'pk', mods={'neg': neg or [0]*n, 'bcast': bcast or [0]*n}, text=_t(op, d, *src, tail=tail.strip()))
    if bcast:
        for b, o in zip(bcast, src):
            if b and isinstance(o, R):
                hi = (o.k, o.i + 1)
                if not any(isinstance(x, R) and hi in x.regs() and not bb for x, bb in zip(src, bcast)):
                    ins.rd.discard(hi)
    return ins

def mfma(d, a, b, c, big=True):
    op = 'v_mfma_f32_32x32x16_bf16' if big else 'v_mfma_f32_16x16x32_bf16'
    assert d.n == (16 if big else 4) and a.n == 4 and b.n == 4
    assert d.i % 2 == 0 and a.i % 2 == 0 and b.i % 2 == 0
    if isinstance(c, R): assert c.k == d.k and c.n == d.n
    return Inst(op, [d], [a, b, c], 'M' if big else 'S', text=_t(op, d, a, b, c))

def dsr(op, d, addr, off=0):
    assert 0 <= off < 65536, off
    if d.n > 1: assert d.i % 2 == 0
    return Inst(op, [d], [addr], 'dsr', mods={'off': off}, text=_t(op, d, addr, tail=f"offset:{off}" if off else ''))

def dsw(op, addr, data, off=0):
    assert 0 <= off < 65536, off
    if data.n > 1: assert data.i % 2 == 0
    return Inst(op, [], [addr, data], 'dsw', mods={'off': off}, text=_t(op, addr, data, tail=f"offset:{off}" if off else ''))

def bload(op, d, voff, srd, soff, off=0):
    assert 0 <= off < 4096
    return Inst(op, [d], [voff, srd, soff], 'vld', mods={'off': off},
                text=_t(op, d, voff, srd, soff, tail="offen" + (f" offset:{off}" if off else '')))

def dma(voff, srd, soff, off=0):
    assert 0 <= off < 4096
    op = 'buffer_load_dwordx4'
    return Inst('dma', [], [voff, srd, soff], 'dma', mods={'off': off}, xrd=[M0],
                text=_t(op, voff, srd, soff, tail="offen" + (f" offset:{off}" if off else '') + " lds"))

def bstore(op, data, voff, srd, soff, off=0, extra=''):
    assert 0 <= off < 4096
    return Inst(op, [], [data, voff, srd, soff], 'vst', mods={'off': off},
                text=_t(op, data, voff, srd, soff, tail="offen" + (f" offset:{off}" if off else '') + extra))
```

```python
from isa import *

VALU_CLS = ('valu', 'trans', 'pk', 'perm')
MF = ('M', 'S')

def insert_waits(ins, verbose=False):
    out = []
    lq = []
    vq = []
    auto = 0
    def emit(l, v):
        nonlocal lq, vq
        if l is None and v is None: return
        if l is not None:
            if any(x.cls == 'smem' for x in lq): l = 0
            l = min(l, 15)
            lq = lq[len(lq) - l:] if l else []
        if v is not None:
            v = min(v, 63)
            vq = vq[len(vq) - v:] if v else []
        out.append(waitcnt(l, v))
    def need(q, pred):
        last = -1
        for i, x in enumerate(q):
            if pred(x): last = i
        return None if last < 0 else len(q) - 1 - last
    for ins_ in ins:
        i = ins_
        if i.op == 'wait_for':
            emit(need(lq, lambda x: x.wr & i.rd), need(vq, lambda x: x.wr & i.rd))
            continue
        if i.op == 'wait_tag':
            t = i.mods['tag']
            emit(need(lq, lambda x: x.tag == t), need(vq, lambda x: x.tag == t))
            continue
        if i.cls == 'wait':
            l, v = i.mods['lgkm'], i.mods['vm']
            if l is not None: lq = lq[len(lq) - l:] if (l and len(lq) > l) else ([] if l == 0 else lq)
            if v is not None: vq = vq[len(vq) - v:] if (v and len(vq) > v) else ([] if v == 0 else vq)
            out.append(i); continue
        if i.cls in ('label', 'branch'):
            l = 0 if lq else None
            v = need(vq, lambda x: bool(x.wr))
            if l is not None or v is not None:
                emit(l, v)
            out.append(i); continue
        if i.cls == 'barrier':
            emit(0 if lq else None, None)
            out.append(i); continue
        touched = i.rd | i.wr
        l = need(lq, lambda x: x.wr & touched)
        v = need(vq, lambda x: x.wr & touched)
        if l is not None or v is not None:
            auto += 1
            if verbose: print("auto wait before:", i.text)
            emit(l, v)
            out[-1].note = 'auto'
        out.append(i)
        if i.cls in ('dsr', 'dsw', 'smem'): lq.append(i)
        if i.cls in ('vld', 'vst', 'dma'): vq.append(i)
    return out

def _vg(s): return {r for r in s if r[0] in 'va'}
def _sg(s): return {r for r in s if r[0] in ('s', 'vcc')}

def req_states(p, c):
    n = 0
    pv = p.cls in VALU_CLS
    cv = c.cls in VALU_CLS
    if pv:
        w = _vg(p.wr)
        if c.cls in MF and w & c.rd: n = max(n, 2)
        if c.cls == 'perm' and w & c.rd: n = max(n, 2)
        if c.op == 'v_readfirstlane_b32' and w & c.rd: n = max(n, 1)
        if p.cls == 'trans' and (cv and c.cls != 'trans') and w & c.rd: n = max(n, 1)
        if p.cls == 'trans' and c.cls in ('dsw', 'vst', 'dsr', 'vld') and w & c.rd: n = max(n, 1)
        sw = _sg(p.wr)
        if sw:
            if cv and sw & c.rd: n = max(n, 2)
            if c.cls in ('vld', 'vst', 'dma') and sw & c.rd: n = max(n, 5)
            if c.cls in ('salu', 'branch', 'smem') and sw & c.rd: n = max(n, 1)
        if ('exec', 0) in p.wr: n = max(n, 5)
    if p.cls in MF:
        big = p.cls == 'M'
        d = p.wr
        if c.cls in MF:
            ab = set(c.src[0].regs()) | set(c.src[1].regs())
            if d & ab: n = max(n, 12 if big else 8)
            cc = c.src[2]
            if isinstance(cc, R) and d & set(cc.regs()):
                same = (c.cls == p.cls and cc.i == p.dst[0].i and cc.k == p.dst[0].k)
                if not same: n = max(n, 10 if big else 6)
            elif d & c.wr:
                n = max(n, 12 if big else 8)
        elif d & (c.rd | c.wr):
            n = max(n, 12 if big else 8)
        cc = p.src[2]
        if isinstance(cc, R) and (cv or c.cls in ('dsr', 'vld')) and set(cc.regs()) & c.wr:
            n = max(n, 7 if big else 3)
    if p.cls == 'salu' and ('m0', 0) in p.wr and c.cls == 'dma': n = max(n, 1)
    if p.cls == 'vst' and p.src[0].n >= 3 and set(p.src[0].regs()) & c.wr:
        n = max(n, 2 if cv else 1)
    if p.cls == 'dsw' and p.src[1].n >= 3 and set(p.src[1].regs()) & c.wr:
        n = max(n, 2 if cv else 1)
    return n

def states(i):
    if i.cls in ('label', 'pseudo', 'raw'): return 0
    if i.cls == 'nop': return i.src[0] + 1
    return 1

def _needed(ctx, c):
    dist = 0; k = 0
    for p in reversed(ctx):
        if dist >= 13: break
        r = req_states(p, c)
        if r > dist: k = max(k, r - dist)
        dist += states(p)
    return k

def fix_hazards(ins, verbose=False):
    changed = True
    it = 0
    while changed:
        changed = False; it += 1
        out = []
        for c in ins:
            if c.cls not in ('label', 'pseudo', 'raw', 'nop'):
                k = _needed(out[-40:], c)
                if k:
                    if verbose: print(f"hazard nop {k} before: {c.text}")
                    while k > 0:
                        n = min(k, 16); x = nop(n - 1); x.note = 'hazard'; out.append(x); k -= n
                    changed = True
            out.append(c)
        ins = out
        labels = {i.src[0]: n for n, i in enumerate(ins) if i.cls == 'label'}
        fix = None
        for n, i in enumerate(ins):
            if i.cls == 'branch':
                tgt = labels[i.src[0]]
                ctx = ins[max(0, n - 40):n + 1]
                seq = list(ctx)
                for m in range(tgt, min(tgt + 30, len(ins))):
                    c = ins[m]
                    if c.cls not in ('label', 'pseudo', 'raw', 'nop'):
                        k = _needed(seq[-60:], c)
                        if k:
                            fix = (m, k); break
                    seq.append(c)
                    if c.cls in ('end',) or (c.cls == 'branch' and c.op == 's_branch'): break
                if fix: break
        if fix:
            m, k = fix
            if verbose: print(f"edge hazard nop {k} before: {ins[m].text}")
            x = nop(k - 1); x.note = 'edge hazard'
            ins.insert(m, x); changed = True
    return ins

def cost_sim(ins, trace=None):
    t = 0; pipe = 0; pkok = 0; prev = None; prevfree = False
    for i in ins:
        c = i.cls
        t0 = t
        if c in ('label', 'pseudo', 'raw'):
            if trace is not None: trace.append((t, i))
            continue
        if c == 'M' or c == 'S':
            s = max(t, pipe); L = 32 if c == 'M' else 16
            pipe = s + L; pkok = s + L + 12; t = s + 8
        elif c == 'pk':
            t = max(t, pkok) + 4
        elif c == 'valu': t += 4
        elif c in ('trans', 'perm'): t += 8
        elif c in ('dsr',):
            t += 4 if (prev in ('M', 'S', 'dsr') or prevfree) else 12
        elif c == 'dsw': t += 16
        elif c in ('wait', 'salu'):
            t += 0 if prev in MF else 4
        elif c == 'nop':
            t += 4 * (i.src[0] + 1) - (4 if prev in MF else 0)
        elif c in ('vld', 'vst', 'dma'): t += 4 if prev in ('M', 'S', 'dsr') or prevfree else 8
        elif c == 'branch': t += 40
        else: t += 4
        prevfree = (c in ('wait', 'salu') and prev in MF)
        prev = c
        if trace is not None: trace.append((t0, i))
    return t
```

```python
import math, sys
from isa import *
import passes

NAME = "standalone__modern_conv_block_convnext__vision"

LOG2E = 1.4426950408889634
GA = 2.0 * math.sqrt(2.0 / math.pi) * LOG2E
GB = GA * 0.044715
SC = GB ** (1.0 / 3.0)
GK = GA / SC
ROWB = 98304
XBYTES = 512 * ROWB

RING = 0; PAIRP = 4160; RINGP = 4 * PAIRP
W1F = 49920
RAW1 = 0
TAB = 73728
B1T = 88128
B2T = 89664
W2F = 90112
LDS_SIZE = 163840

vA, vB, vB1, vTab, vConv, vRes = V(0), V(1), V(2), V(3), V(4), V(5)
vDMA = V(6, 4); vSt = V(10); vTmp = V(11)
S2 = V(12, 2); Q2 = V(14, 2)
X = [V(16, 16), V(32, 16)]
T = V(48, 16)
ACC = V(64, 48)
CV = V(112, 48)
Z = V(160, 24)
YP = V(184, 8)
W2S = V(192, 24)
CS = V(216, 24)
IDF = V(240, 8)
W1S = V(248, 4)
SPARE = V(252, 4)

SRDX, SRDO, SRDT, SRDU = S(4, 4), S(8, 4), S(12, 4), S(16, 4)
sK, sS = S(20, 2), S(22, 2)
sInv96, sEps, sCnt, sW, sSt, sDma, sP0, sP1 = (S(i) for i in range(24, 32))
sT0, sT1, sT2, sT3 = (S(i) for i in range(32, 36))
KA = S(36, 16)
sDma2, sC0, sR0, sT4, sT5 = (S(i) for i in range(52, 57))

NR = [(j, 5) for j in range(4, 12)]
RES = {}
for j in range(12):
    for sg in range(6):
        if (j, sg) not in NR: RES[(j, sg)] = A(4 * len(RES), 4)
assert len(RES) <= 64

def w2addr(f):
    if f < 8: return vA, W2F - W1F + 1024 * f
    return vB, 1024 * (f - 8)

COST = {'valu': 4, 'trans': 8, 'perm': 8, 'dsr': 4, 'salu': 4, 'pseudo': 0, 'vst': 4, 'dma': 4, 'wait': 0, 'nop': 4}

def sched_M(mf, post, fill, pre=()):
    n = len(mf)
    gaps = {g: [] for g in range(-1, n)}
    cost = {g: 0 for g in range(-1, n)}
    for g in range(n):
        k = 0
        for i in post.get(g, []):
            c = COST[i.cls]
            if i.cls in ('salu', 'pseudo') and k == 0: c = 0
            cost[g] += c; k += 1
    need = {-1: 0}
    for g in range(n):
        L = 32 if mf[g].cls == 'M' else 16
        need[g] = L - 8 + (12 if g == n - 1 else 0)
    rest = []
    for (i, e, l) in fill:
        if l < n:
            gaps[e].append(i); cost[e] += COST[i.cls]
        else: rest.append((i, e))
    g = 0
    k = 0
    while k < len(rest):
        remc = sum(COST[i.cls] for i, _ in rest[k:])
        remneed = sum(max(0, need[x] - cost[x]) for x in range(g, n))
        extra = max(0, remc - remneed) / (n - g)
        i, e = rest[k]
        if e > g: g = e; continue
        c = COST[i.cls]
        if g == n - 1 or cost[g] < need[g] or cost[g] + c <= need[g] + extra + 0.01:
            gaps[g].append(i); cost[g] += c; k += 1
        else: g += 1
    out = list(pre) + gaps[-1]
    for g in range(n):
        out.append(mf[g]); out += post.get(g, []); out += gaps[g]
    return out

def interleave(a, b):
    if not b: return list(a)
    out = []; k = 0
    for n, x in enumerate(a):
        out.append(x)
        while k < len(b) and (k + 1) * len(a) <= (n + 1) * len(b) + 0:
            out.append(b[k]); k += 1
    out += b[k:]
    return out

def conv_reads(g, m):
    a = dsr('ds_read_b128', CS[8 * m:8 * m + 4], vTab, (m * 12 + g) * 400)
    b = dsr('ds_read_b128', CS[8 * m + 4:8 * m + 8], vConv, m * 192 + 16 * g)
    return [a, b]
def conv_mfma(g, m):
    d = CV[4 * g:4 * g + 4]
    return mfma(d, CS[8 * m:8 * m + 4], CS[8 * m + 4:8 * m + 8], 0 if m == 0 else d, big=False)
def ln_stats(g):
    p0, p1 = CV[4 * g:4 * g + 2], CV[4 * g + 2:4 * g + 4]
    if g == 0:
        return [pk('v_pk_add_f32', S2, p0, p1), pk('v_pk_mul_f32', Q2, p0, p0), pk('v_pk_fma_f32', Q2, p1, p1, Q2)]
    return [pk('v_pk_add_f32', S2, S2, p0), pk('v_pk_fma_f32', Q2, p0, p0, Q2),
            pk('v_pk_add_f32', S2, S2, p1), pk('v_pk_fma_f32', Q2, p1, p1, Q2)]
def ln_final():
    a, b, c, d = S2[0], S2[1], Q2[0], Q2[1]
    f = valu('v_fma_f32', b, a, a, b); f.mods['neg'] = [1, 0, 0]; f.text = f"  v_fma_f32 {b}, -{a}, {a}, {b}"
    o = [valu('v_add_f32', a, a, b), valu('v_add_f32', c, c, d), permswap(a, c), valu('v_add_f32', a, a, c),
         valu('v_mov_b32', c, a), permswap(a, c),
         valu('v_mul_f32', a, sInv96, a), valu('v_mul_f32', b, sInv96, c), f,
         valu('v_max_f32', b, 0, b), valu('v_add_f32', b, sEps, b), valu('v_rsq_f32', b, b),
         valu('v_sub_f32', a, 0, a),
         valu('v_mul_f32', c, sS[0], b), valu('v_mul_f32', a, a, c)]
    return o
def ln_norm():
    return [pk('v_pk_fma_f32', CV[2 * i:2 * i + 2], CV[2 * i:2 * i + 2], Q2, S2, bcast=[0, 1, 1]) for i in range(24)]
def ln_cvt():
    return [valu('v_cvt_pk_bf16_f32', Z[i], CV[2 * i], CV[2 * i + 1]) for i in range(24)]
def b1_reads(s):
    return [dsr('ds_read_b128', X[s % 2][4 * a:4 * a + 4], vB1, 4 * (32 * s + 8 * a)) for a in range(4)]
def rotate(r):
    return [valu('v_subrev_u32', vTmp, RINGP, r), valu('v_add_u32', r, 2 * RINGP, r), valu('v_min_u32', r, vTmp, r)]
def w2_reads(j):
    o = []
    for f in range(6):
        b, off = w2addr(6 * j + f)
        o.append(dsr('ds_read_b128', W2S[4 * f:4 * f + 4], b, off))
    return o
def g2_mfmas():
    return [mfma(ACC[16 * t:16 * t + 16], W2S[4 * (3 * k + t):4 * (3 * k + t) + 4], YP[4 * k:4 * k + 4], ACC[16 * t:16 * t + 16])
            for k in range(2) for t in range(3)]
def epi_cvt():
    return [valu('v_cvt_pk_bf16_f32', CV[i], ACC[2 * i], ACC[2 * i + 1]) for i in range(24)]
def epi_stores():
    return [bstore('buffer_store_dwordx4', CV[4 * k:4 * k + 4], vSt, SRDO, sSt, 32 * k) for k in range(6)]


class Phase:
    def __init__(p, ms, cg):
        p.mf = []
        for k, m_ in enumerate(ms):
            p.mf.append(m_)
            if cg is not None and k < 3: p.mf.append(conv_mfma(cg, k))
        p.M = [k for k, m_ in enumerate(p.mf) if m_.cls == 'M']
        p.S = [k for k, m_ in enumerate(p.mf) if m_.cls == 'S']
        p.post = {}; p.fl = []; p.dl = []
    def after(p, g, *l): p.post.setdefault(g, []).extend(l)
    def first(p, g, *l): p.post[g] = list(l) + p.post.get(g, [])
    def build(p):
        return sched_M(p.mf, p.post, p.dl + [(i, 0, 99) for i in p.fl])

C0 = 5
def body(first=False, last=False):
    o = []
    st = epi_stores()
    for s in range(12):
        xs, xp = X[s % 2], X[(s - 1) % 2]
        prev = not (first and s == 0)
        o.append(raw(f"  ; ---- step {s} M1"))
        cg = 2 * (s - C0) if (C0 <= s < C0 + 6 and not last) else None
        p = Phase([mfma(xs, RES.get((s, sg), W1S), Z[4 * sg:4 * sg + 4], xs) for sg in range(6)], cg)
        if (s, 5) in NR:
            p.after(p.M[0], dsr('ds_read_b128', W1S, vA, 1024 * NR.index((s, 5))))
            p.first(p.M[4], wait_for(W1S))
        if prev:
            wr = w2_reads((s - 1) % 12)
            for k in range(6): p.after(p.M[k // 2], wr[k])
            p.fl = [valu('v_rcp_f32', T[i], T[i]) for i in range(16)]
        if cg is not None:
            for m in range(3): p.after(p.S[m], *conv_reads(cg + 1, m))
        if s == 0:
            for k in range(6): p.after(p.M[3 + k // 3], dsr('ds_read_b128', CV[24 + 4 * k:28 + 4 * k], vRes, 32 * k))
        if s == 1 and not first: p.fl = interleave(p.fl, epi_cvt())
        if s == 11 and not last: p.fl = interleave(p.fl, ln_final())
        if s in (2, 3, 4) and not first: p.after(p.M[3], st[2 * (s - 2)])
        p.first(p.M[5], wait_for(W2S, CS))
        o += p.build()
        if s == 1:
            o += [dsr('ds_read_b128', ACC[4 * k:4 * k + 4], vB1, B2T - B1T + 32 * k) for k in range(12)]
        o.append(raw(f"  ; ---- step {s} Pa"))
        pa = []
        if prev: pa += [pk('v_pk_mul_f32', xp[2 * i:2 * i + 2], xp[2 * i:2 * i + 2], T[2 * i:2 * i + 2]) for i in range(8)]
        if cg is not None: pa += ln_stats(cg)
        if s == 11 and not last: pa += ln_norm()
        pa += [pk('v_pk_fma_f32', T[2 * i:2 * i + 2], xs[2 * i:2 * i + 2], xs[2 * i:2 * i + 2], sK, neg=[1, 0, 1]) for i in range(8)]
        pa += [pk('v_pk_mul_f32', T[2 * i:2 * i + 2], xs[2 * i:2 * i + 2], T[2 * i:2 * i + 2]) for i in range(8)]
        cv = [valu('v_cvt_pk_bf16_f32', YP[i], xp[2 * i], xp[2 * i + 1]) for i in range(8)] if prev else []
        pa = pa[:-3] + cv[:4] + pa[-3:]
        o += pa
        o.append(raw(f"  ; ---- step {s} M2"))
        g2 = g2_mfmas() if prev else []
        if s == 1:
            g2 = g2 + [mfma(ACC[16 * t:16 * t + 16], IDF[4 * k:4 * k + 4], CV[24 + 4 * (2 * t + k):28 + 4 * (2 * t + k)],
                            ACC[16 * t:16 * t + 16]) for k in range(2) for t in range(3)]
        cg = 2 * (s - C0) + 1 if (C0 <= s < C0 + 6 and not last) else None
        ex = [valu('v_exp_f32', T[i], T[i]) for i in range(16)]
        br = b1_reads((s + 1) % 12) if not (last and s == 11) else []
        dm = []
        if s in (0, 1) and not last:
            dm = [salu('s_mov_b32', M0, sP0 if s == 0 else sP1)]
            for k in range(4):
                d = dma(vDMA[k], SRDX, sDma if s == 0 else sDma2, 1024 * k); d.tag = 'xdma'; dm.append(d)
        if not g2:
            o += [wait_for(CV)] + br + dm[:1] + ex[:1] + dm[1:] + ex[1:]
        else:
            p = Phase(g2, cg)
            p.dl = [(c, 0, p.M[2]) for c in cv[4:]]
            for k, b in enumerate(br): p.after(p.M[1 + k // 2], b)
            if cg is not None and cg < 11:
                for m in range(3): p.after(p.S[m], *conv_reads(cg + 1, m))
            if s == C0 - 1 and not last:
                p.first(p.M[0], wait_tag('xdma'))
                for m in range(3): p.after(p.M[m], *conv_reads(0, m))
            if dm:
                p.first(p.M[0], dm[0])
                if s == 0: p.first(p.M[1], wait_for(CV))
                for k in range(4): p.after(p.M[1 + k], dm[1 + k])
            if s == 11 and not last: ex = interleave(ex, ln_cvt()) + rotate(vConv)
            if s == 2 and not last: ex = interleave(ex, rotate(vRes))
            if s in (2, 3, 4) and not first: p.after(p.M[3], st[2 * (s - 2) + 1])
            if s == 6 and not last:
                ups = [salu('s_add_u32', sDma, sDma, 4 * ROWB), salu('s_add_u32', sDma2, sDma2, 4 * ROWB),
                       salu('s_mov_b32', sT0, sP0), salu('s_add_u32', sP0, sT1, 32), salu('s_sub_u32', sT1, sP1, 0),
                       salu('s_sub_u32', sP1, sT0, 32)]
                for k, u in enumerate(ups): p.first(p.M[k], u)
            if s == 7:
                p.first(p.M[0], salu('s_mov_b32', sSt, sT2))
                p.first(p.M[1], salu('s_add_u32', sT2, sT2, 4 * ROWB))
            p.fl = ex
            p.first(p.M[-1], wait_for(X[0], X[1], CS))
            o += p.build()
        o.append(raw(f"  ; ---- step {s} Pb"))
        pb = [pk('v_pk_fma_f32', T[2 * i:2 * i + 2], T[2 * i:2 * i + 2], sS, sS) for i in range(8)]
        if cg is not None: pb = ln_stats(cg) + pb
        o += pb
    return o

def tail():
    o = [raw("  ; ---- tail")]
    xp = X[1]
    o += w2_reads(11)
    o += [valu('v_rcp_f32', T[i], T[i]) for i in range(16)]
    o += [pk('v_pk_mul_f32', xp[2 * i:2 * i + 2], xp[2 * i:2 * i + 2], T[2 * i:2 * i + 2]) for i in range(8)]
    o += [valu('v_cvt_pk_bf16_f32', YP[i], xp[2 * i], xp[2 * i + 1]) for i in range(8)]
    g = g2_mfmas()
    o += [g[0], g[3], g[1], g[4], g[2], g[5]]
    ec = epi_cvt(); st = epi_stores()
    for k in range(6):
        o += ec[4 * k:4 * k + 4] + [st[k]]
    return o

SRD = {'x': SRDX, 'dw': S(60, 4), 'w1': S(64, 4), 'b1': S(68, 4), 'w2': S(72, 4), 'b2': S(76, 4), 'g': S(80, 4), 'out': SRDO}
SIZES = {'x': XBYTES, 'dw': 1728, 'w1': 73728, 'b1': 768, 'w2': 73728, 'b2': 192, 'g': 192, 'out': XBYTES}

def prologue():
    o = []
    e = o.append
    tmp = [V(i) for i in list(range(16, 64)) + list(range(184, 192)) + list(range(248, 256))]
    def new(): return tmp.pop(0)
    def v(op, *src, d=None):
        d = d or new(); e(valu(op, d, *src)); return d
    e(scmp('s_cmp_ge_u32', S(2), 256)); e(branch('s_cbranch_scc1', 'L_end'))
    e(sload(KA, S(0, 2), 0))
    tid = v('v_mov_b32', V(0))
    lane = v('v_and_b32', 63, V(0))
    wv = v('v_lshrrev_b32', 6, V(0))
    l16 = v('v_lshlrev_b32', 4, lane)
    e(rfl(sW, wv))
    e(salu('s_lshr_b32', sR0, S(2), 4)); e(salu('s_lshl_b32', sR0, sR0, 5))
    e(salu('s_and_b32', sC0, S(2), 15)); e(salu('s_lshl_b32', sC0, sC0, 5))
    e(salu('s_lshl_b32', sT0, sW, 3)); e(salu('s_add_u32', sC0, sC0, sT0))
    sW3 = S(57); sWP = S(58); sWQ = S(59)
    e(salu('s_min_u32', sW3, sW, 2))
    e(salu('s_mul_i32', sWP, sW, PAIRP))
    e(salu('s_mul_i32', sWQ, sW, 18432))
    c8 = v('v_and_b32', 7, lane)
    b3 = v('v_bfe_u32', lane, 3, 1)
    b4 = v('v_bfe_u32', lane, 4, 1)
    b5 = v('v_lshrrev_b32', 5, lane)
    b2_ = v('v_bfe_u32', lane, 2, 1)
    lo2 = v('v_and_b32', 3, lane)
    q = v('v_lshrrev_b32', 4, lane)
    sLo, sHi, sBase = sT3, sT4, sT5
    e(scmp('s_cmp_eq_u32', sC0, 0)); e(salu('s_cselect_b32', sLo, 12, 0))
    e(scmp('s_cmp_eq_u32', sC0, 504)); e(salu('s_cselect_b32', sHi, 12, 0))
    e(salu('s_add_u32', sHi, sHi, sLo)); e(salu('s_sub_u32', sHi, 120, sHi))
    e(salu('s_mul_i32', sBase, sC0, 192)); e(salu('s_add_u32', sBase, sBase, 4096 - 192))
    big = v('v_mov_b32', 0x80000000)
    t0, t1, t2 = new(), new(), new()
    for p in range(4):
        if p == 0:
            v('v_mov_b32', lane, d=t0); v('v_mov_b32', 0, d=t1)
        elif p == 1:
            v('v_add_u32', 64, lane, d=t0)
            v('v_subrev_u32', 57, lane, d=t2)
            e(vcmp('v_cmp_le_u32', 57, lane))
            v('v_mov_b32', ROWB - 1024, d=t1)
            e(valu('v_cndmask_b32', t0, t0, t2))
            v('v_mov_b32', -1024, d=t2)
            e(valu('v_cndmask_b32', t1, t2, t1))
        else:
            v('v_add_u32', 64 * p - 121, lane, d=t0); v('v_mov_b32', ROWB - 1024 * p, d=t1)
        v('v_lshl_add_u32', t0, 4, t1, d=t1)
        v('v_add_u32', sBase, t1, d=t1)
        v('v_subrev_u32', sLo, t0, d=t0)
        e(vcmp('v_cmp_gt_u32', sHi, t0))
        e(valu('v_cndmask_b32', vDMA[p], big, t1))
    e(waitcnt(lgkm=0))
    for n, k in enumerate(['x', 'dw', 'w1', 'b1', 'w2', 'b2', 'g', 'out']):
        r = SRD[k]
        e(salu('s_mov_b32', r[0], KA[2 * n])); e(salu('s_mov_b32', r[1], KA[2 * n + 1]))
        e(salu('s_mov_b32', r[2], SIZES[k])); e(salu('s_mov_b32', r[3], 0x00020000))
    for i in range(18):
        if i % 4 == 0:
            e(salu('s_add_u32', sT0, sWQ, 1024 * i)); e(salu('s_add_u32', M0, sT0, W2F))
        d = dma(l16, SRD['w2'], sT0, 1024 * (i % 4)); d.tag = 'raw2'; e(d)
    gch = v('v_lshlrev_b32', 4, b4)
    v('v_lshl_add_u32', b2_, 3, gch, d=gch); v('v_lshl_add_u32', b3, 2, gch, d=gch); v('v_add_u32', gch, lo2, d=gch)
    v('v_lshlrev_b32', 1, gch, d=gch)
    G = [new(), new(), new()]
    for t in range(3): e(bload('buffer_load_ushort', G[t], gch, SRD['g'], 0, 64 * t))
    e(salu('s_lshl_b32', sT0, sW3, 6))
    g2, b2v = new(), new()
    e(bload('buffer_load_ushort', g2, gch, SRD['g'], sT0)); e(bload('buffer_load_ushort', b2v, gch, SRD['b2'], sT0))
    l4 = v('v_lshlrev_b32', 2, lane)
    e(salu('s_lshl_b32', sT1, sW3, 8))
    b1v = new(); e(bload('buffer_load_dword', b1v, l4, SRD['b1'], sT1))
    tid2 = v('v_lshlrev_b32', 1, tid)
    DW = [new() for _ in range(4)]
    for kr in range(3): e(bload('buffer_load_ushort', DW[kr], tid2, SRD['dw'], 0, 576 * kr))
    l31 = v('v_and_b32', 31, lane)
    idxb = v('v_lshlrev_b32', 1, l31)
    e(salu('s_mul_i32', sT2, sW3, 576))
    e(bload('buffer_load_ushort', DW[3], idxb, SRD['dw'], sT2, 512))
    e(salu('s_mul_i32', sT0, sR0, ROWB))
    for p in range(4):
        e(salu('s_add_u32', sT1, sT0, (-ROWB - 4096 + 1024 * p) & 0xffffffff))
        v('v_add_u32', sT1, vDMA[p], d=t0)
        e(bload('buffer_load_dwordx4', CV[4 * p:4 * p + 4], t0, SRDX, 0))
    for k in (1, 2):
        e(salu('s_add_u32', sT1, sT0, (2 * k - 1) * ROWB - 4096))
        for p in range(4):
            e(bload('buffer_load_dwordx4', CV[16 * k + 4 * p:16 * k + 4 * p + 4], vDMA[p], SRDX, sT1, 1024 * p))
    e(salu('s_add_u32', sDma, sT0, 5 * ROWB - 4096)); e(salu('s_add_u32', sDma2, sT0, 7 * ROWB - 4096))
    r1 = v('v_lshlrev_b32', 2, b4)
    v('v_xor_b32', r1, c8, d=r1); v('v_lshlrev_b32', 4, r1, d=r1)
    l8 = v('v_lshrrev_b32', 3, lane)
    e(valu('v_mov_b32', t1, 768)); v('v_mad_u32_u24', l8, t1, r1, d=r1)
    e(salu('s_mul_i32', sT3, sW, 3072))
    for jj in range(6):
        for k in range(3):
            e(salu('s_add_u32', sT1, sWQ, k * 6144 + jj * 128))
            e(salu('s_add_u32', M0, sT3, RAW1 + jj * 12288 + k * 1024))
            d = dma(r1, SRD['w1'], sT1); d.tag = 'raw1'; e(d)
    for r, val in ((sK[0], GK), (sK[1], GK), (sS[0], SC), (sS[1], SC), (sInv96, 1.0 / 96), (sEps, 1e-5)):
        e(salu('s_mov_b32', r, f2u(val)))
    rel = new()
    def ring_addr(dst, iota, extra):
        kk = v('v_lshrrev_b32', 1, iota, d=t0)
        e(valu('v_mov_b32', t1, RINGP)); v('v_mul_u32_u24', kk, t1, d=rel)
        v('v_and_b32', 1, kk, d=t0); v('v_lshl_add_u32', t0, 5, rel, d=rel)
        v('v_and_b32', 1, iota, d=t0); e(valu('v_mov_b32', t1, 121 * 16)); v('v_mad_u32_u24', t0, t1, rel, d=rel)
        e(valu('v_mov_b32', t1, 192)); v('v_mad_u32_u24', c8, t1, rel, d=rel)
        if extra is not None: v('v_add_u32', rel, extra, d=rel)
        v('v_add_u32', sWP, rel, d=dst)
    io = v('v_lshl_add_u32', b3, 1, q)
    ring_addr(vConv, io, None)
    prow = v('v_lshl_add_u32', b3, 1, b4)
    v('v_add_u32', 1, prow, d=io)
    h16 = v('v_lshlrev_b32', 4, b5)
    ex = v('v_add_u32', 192, h16)
    ring_addr(vRes, io, ex)
    e(valu('v_mov_b32', t1, ROWB)); v('v_mad_u32_u24', prow, t1, h16, d=vSt)
    v('v_add_u32', sC0, c8, d=t0); e(valu('v_mov_b32', t1, 192)); v('v_mad_u32_u24', t0, t1, vSt, d=vSt)
    v('v_add_u32', B1T, h16, d=vB1)
    v('v_sub_u32', q, b2_, d=t0)
    v('v_lshl_add_u32', b3, 2, lo2, d=t1)
    v('v_lshl_add_u32', t0, 3, t1, d=t1)
    e(vcmp('v_cmp_gt_u32', 3, t0))
    v('v_mov_b32', 24, d=t2)
    e(valu('v_cndmask_b32', t1, t2, t1))
    v('v_lshlrev_b32', 4, t1, d=t1); v('v_add_u32', TAB, t1, d=vTab)
    v('v_lshlrev_b32', 2, b4, d=t0); v('v_lshl_add_u32', b3, 1, t0, d=t0)
    v('v_bfe_u32', lane, 1, 1, d=t1); v('v_add_u32', t0, t1, d=t0)
    v('v_and_b32', 1, lane, d=t1); v('v_lshlrev_b32', 4, t1, d=t1)
    shl = v('v_mov_b32', t1)
    v('v_mov_b32', 0x3f80, d=t2); v('v_lshlrev_b32', t1, t2, d=t1)
    e(vcmp('v_cmp_eq_u32', b2_, b5))
    e(valu('v_cndmask_b32', t1, 0, t1))
    for i in range(8):
        e(vcmp('v_cmp_eq_u32', i, t0)); e(valu('v_cndmask_b32', IDF[i], 0, t1))
    MK = W2S[0:4]; DT = W2S[4:8]; ZR = W2S[8:12]
    v('v_mov_b32', 0xffff, d=t2); v('v_lshlrev_b32', shl, t2, d=t2)
    v('v_bfe_u32', lane, 1, 2, d=t0)
    for i in range(4):
        e(vcmp('v_cmp_eq_u32', i, t0)); e(valu('v_cndmask_b32', MK[i], 0, t2))
        e(valu('v_mov_b32', ZR[i], 0))
    e(valu('v_mov_b32', t1, 400))
    v('v_min_u32', 35, lane, d=t0); v('v_mul_u32_u24', t0, t1, d=t0); v('v_add_u32', TAB + 384, t0, d=t0)
    e(dsw('ds_write_b128', t0, ZR))
    ta = v('v_lshrrev_b32', 3, tid); v('v_mul_u32_u24', ta, t1, d=ta); v('v_lshl_add_u32', c8, 4, ta, d=ta)
    v('v_add_u32', TAB, ta, d=ta)
    tb = v('v_lshrrev_b32', 3, l31); v('v_mul_u32_u24', tb, t1, d=tb); v('v_lshl_add_u32', c8, 4, tb, d=tb)
    e(salu('s_lshl_b32', sT0, sW3, 7)); e(salu('s_add_u32', sT0, sT0, TAB + 32 * 400))
    v('v_add_u32', sT0, tb, d=tb)
    for k in range(4):
        D = W2S[8 + 4 * k:12 + 4 * k] if k else DT
        v('v_lshl_or_b32', DW[k], 16, DW[k], d=DW[k])
        for i in range(4): e(valu('v_and_b32', D[i], MK[i], DW[k]))
        e(dsw('ds_write_b128', ta if k < 3 else tb, D, 128 * k if k < 3 else 0))
    PB = CS[0:2]
    v('v_lshlrev_b32', 16, b1v, d=PB[0]); v('v_and_b32', 0xffff0000, b1v, d=PB[1])
    e(pk('v_pk_mul_f32', PB, PB, sS))
    e(salu('s_lshl_b32', sT0, sW3, 9)); e(salu('s_add_u32', sT0, sT0, B1T))
    v('v_lshlrev_b32', 3, lane, d=t0); v('v_add_u32', sT0, t0, d=t0)
    e(dsw('ds_write_b64', t0, PB))
    v('v_lshlrev_b32', 16, g2, d=g2); v('v_lshlrev_b32', 16, b2v, d=b2v); v('v_mul_f32', g2, b2v, d=g2)
    e(salu('s_lshl_b32', sT0, sW3, 7)); e(salu('s_add_u32', sT0, sT0, B2T))
    v('v_lshlrev_b32', 2, l31, d=t0); v('v_add_u32', sT0, t0, d=t0)
    e(dsw('ds_write_b32', t0, g2))
    GP = [CS[2 + 2 * t:4 + 2 * t] for t in range(3)]
    for t in range(3): v('v_lshlrev_b32', 16, G[t], d=GP[t][0])
    rr = v('v_bfe_u32', lane, 2, 2)
    hr = v('v_lshl_add_u32', b5, 2, rr)
    a2 = new()
    e(valu('v_mov_b32', t1, 192)); v('v_mul_u32_u24', hr, t1, d=a2)
    v('v_lshl_add_u32', b4, 5, a2, d=a2)
    v('v_and_b32', 1, lane, d=t0); v('v_lshl_add_u32', t0, 4, a2, d=a2)
    v('v_bfe_u32', lane, 1, 1, d=t0); v('v_lshl_add_u32', t0, 3, a2, d=a2)
    e(salu('s_add_u32', sT0, sWQ, W2F))
    v('v_add_u32', sT0, a2, d=a2)
    w2w = v('v_add_u32', sT0, l16)
    FR = [ACC[0:24], ACC[24:48], Z[0:24]]
    e(wait_tag('raw2'))
    for jl in range(3):
        for k in range(2):
            for t in range(3):
                for u in range(2):
                    f = 3 * k + t
                    e(dsr('ds_read_b64_tr_b16', FR[jl][4 * f + 2 * u:4 * f + 2 * u + 2], a2, jl * 6144 + (16 * k + 8 * u) * 192 + 64 * t))
    UP = CS[8:24]
    for jl in range(3):
        e(wait_for(FR[jl]))
        for f in range(6):
            t = f % 3
            fr = FR[jl][4 * f:4 * f + 4]
            up = UP[8 * (f % 2):8 * (f % 2) + 8]
            for d in range(4):
                e(valu('v_lshlrev_b32', up[2 * d], 16, fr[d])); e(valu('v_and_b32', up[2 * d + 1], 0xffff0000, fr[d]))
            for d in range(4): e(pk('v_pk_mul_f32', up[2 * d:2 * d + 2], up[2 * d:2 * d + 2], GP[t], bcast=[0, 1]))
            for d in range(4): e(valu('v_cvt_pk_bf16_f32', fr[d], up[2 * d], up[2 * d + 1]))
            e(dsw('ds_write_b128', w2w, fr, jl * 6144 + f * 1024))
    a1 = [new(), new(), new(), new()]
    v('v_lshlrev_b32', 7, hr, d=a1[0]); v('v_lshl_add_u32', b4, 5, a1[0], d=a1[0]); v('v_lshl_add_u32', lo2, 3, a1[0], d=a1[0])
    v('v_lshl_add_u32', b3, 6, a1[0], d=a1[0])
    v('v_xor_b32', 64, a1[0], d=a1[1])
    v('v_add_u32', 36864, a1[0], d=a1[2]); v('v_add_u32', 36864, a1[1], d=a1[3])
    e(salu('s_mul_i32', sT0, sW, 12288))
    an = [v('v_add_u32', sT0, a1[0]), v('v_add_u32', sT0, a1[1])]
    e(wait_tag('raw1'))
    e(barrier())
    NRS = W2S[0:8]
    assert NR == [(j, 5) for j in range(4, 12)]
    for jo in range(2):
        for u in range(2):
            e(dsr('ds_read_b64_tr_b16', NRS[4 * jo + 2 * u:4 * jo + 2 * u + 2], an[jo], RAW1 + 2 * 12288 + (80 + 8 * u) * 128))
    for (j, sg), r in RES.items():
        jj, jo = j // 2, j % 2
        for u in range(2):
            e(dsr('ds_read_b64_tr_b16', r[2 * u:2 * u + 2], a1[jo + 2 * (jj >= 3)], RAW1 + (jj % 3) * 12288 + (16 * sg + 8 * u) * 128))
    v('v_add_u32', W1F, l16, d=vA); v('v_add_u32', 98304, l16, d=vB)
    e(salu('s_lshl_b32', sT0, sW, 11))
    wa = v('v_add_u32', sT0, vA)
    ra = v('v_add_u32', sWP, l16)
    e(barrier())
    for jo in range(2): e(dsw('ds_write_b128', wa, NRS[4 * jo:4 * jo + 4], 1024 * jo))
    for k in range(3):
        for p in range(4):
            e(dsw('ds_write_b128', ra, CV[16 * k + 4 * p:16 * k + 4 * p + 4], k * RINGP + 32 * (k & 1) + 1024 * p))
    e(salu('s_add_u32', sP0, sWP, 32)); e(salu('s_add_u32', sP1, sWP, RINGP)); e(salu('s_add_u32', sT1, sWP, 2 * RINGP))
    e(salu('s_mul_i32', sT2, sR0, ROWB)); e(salu('s_mov_b32', sSt, 0x80000000))
    for m in range(3): o.extend(conv_reads(0, m))
    for g in range(12):
        for m in range(3):
            e(conv_mfma(g, m))
            if g < 11: o.extend(conv_reads(g + 1, m))
    o.extend(b1_reads(0))
    for g in range(12): o.extend(ln_stats(g))
    o.extend(ln_final()); o.extend(ln_norm()); o.extend(ln_cvt()); o.extend(rotate(vConv))
    e(barrier())
    return o

def build(peel=False):
    o = prologue()
    if peel:
        o += body(first=True)
        o.append(salu('s_mov_b32', sCnt, 6))
    else:
        o.append(salu('s_mov_b32', sCnt, 8))
    o.append(raw("  .p2align 6"))
    o.append(label('L_loop'))
    b = body()
    o += b
    o += [salu('s_sub_u32', sCnt, sCnt, 1), scmp('s_cmp_lg_u32', sCnt, 0), branch('s_cbranch_scc1', 'L_loop')]
    if peel: o += body(last=True)
    o += tail()
    o.append(label('L_end'))
    o.append(endpgm())
    o = passes.insert_waits(o)
    o = passes.fix_hazards(o)
    return o

HEAD = """; Kernarg layout (80 bytes, ptrs only, base s[0:1]): x, dw, w1, b1, w2, b2, gamma, out, debug, ws
; @launch grid=(256,1,1) block=(256,1,1) lds=163840
.amdgcn_target "amdgcn-amd-amdhsa--gfx950"
.text
.globl {n}_kernel
.p2align 8
.type {n}_kernel,@function
{n}_kernel:
"""
FOOT = """.section .rodata,"a"
.p2align 6
.amdhsa_kernel {n}_kernel
  .amdhsa_next_free_vgpr 512
  .amdhsa_next_free_sgpr 102
  .amdhsa_accum_offset 256
  .amdhsa_group_segment_fixed_size 0
  .amdhsa_kernarg_size 80
  .amdhsa_user_sgpr_count 2
  .amdhsa_user_sgpr_kernarg_segment_ptr 1
  .amdhsa_system_sgpr_workgroup_id_x 1
.end_amdhsa_kernel
"""
def emit(ins):
    return HEAD.format(n=NAME) + "\n".join(str(i) for i in ins) + "\n" + FOOT.format(n=NAME)

if __name__ == '__main__':
    peel = '--peel' in sys.argv
    ins = build(peel)
    out = [a for a in sys.argv[1:] if not a.startswith('--')]
    path = out[0] if out else f"/code/{NAME}.s"
    open(path, 'w').write(emit(ins))
    a = next(n for n, i in enumerate(ins) if i.cls == 'label' and i.src[0] == 'L_loop')
    b = next(n for n, i in enumerate(ins) if i.cls == 'branch' and i.src[0] == 'L_loop')
    print("insts", len(ins), "prologue cost", passes.cost_sim(ins[:a]), "loop cost", passes.cost_sim(ins[a:b + 1]), "tail", passes.cost_sim(ins[b + 1:]))
    print("auto waits in loop:", sum(1 for i in ins[a:b] if i.note == 'auto'), "hazard nops in loop:", sum(1 for i in ins[a:b] if i.note and 'hazard' in i.note))
```

```python
from isa import *
LOOP_S = [36 + 2 * k for k in range(8)] + [60 + 2 * k for k in range(19)]
def instrument(ins, loop_marks):
    out = []
    pro = 0
    inloop = False
    names_pro = []; names_loop = []
    started = False
    for i in ins:
        t = i.text
        if i.cls == 'smem' and not started:
            started = True
            out.append(raw("  s_load_dwordx2 s[16:17], s[0:1], 72"))
            out.append(raw("  s_memtime s[84:85]")); out.append(raw("  s_memrealtime s[86:87]"))
            names_pro += ['start', 'rt0']; pro = 2
        if i.cls == 'raw' and t.startswith('  ; P:'):
            assert pro < 9
            out.append(raw(f"  s_memtime s[{84+2*pro}:{85+2*pro}]")); names_pro.append(t[6:]); pro += 1
        if i.cls == 'raw' and t.startswith('  .p2align 6') and not inloop:
            out.append(raw("  s_memrealtime s[36:37]"))
            out.append(raw("  s_waitcnt lgkmcnt(0)"))
            out.append(raw("  v_mov_b32 v252, 0"))
            out.append(raw("  v_writelane_b32 v252, s36, 15"))
            for k in range(pro): out.append(raw(f"  v_writelane_b32 v252, s{84+2*k}, {k}"))
            out.append(raw("  s_mov_b32 s18, 0x10000000")); out.append(raw("  s_mov_b32 s19, 0x00020000"))
            out.append(raw("  v_mbcnt_lo_u32_b32 v254, -1, 0")); out.append(raw("  v_mbcnt_hi_u32_b32 v254, -1, v254"))
            out.append(raw("  v_lshlrev_b32 v254, 2, v254"))
            out.append(raw("  s_lshl_b32 s100, s2, 2")); out.append(raw("  s_add_u32 s100, s100, s27")); out.append(raw("  s_lshl_b32 s100, s100, 12"))
            out.append(raw("  s_add_u32 s101, s100, 256"))
            out.append(raw("  v_mov_b32 v253, 0"))
        if i.cls == 'label' and i.src[0] == 'L_loop': inloop = True
        if inloop and i.cls == 'raw' and any(t.endswith(m) for m in loop_marks) and t.startswith('  ; ---- step'):
            k = len(names_loop); r = LOOP_S[k]
            out.append(raw(f"  s_memtime s[{r}:{r+1}]")); names_loop.append(t[9:])
        if inloop and i.op == 's_sub_u32' and str(i.dst[0]) == 's26':
            k = len(names_loop); r = LOOP_S[k]
            out.append(raw(f"  s_memtime s[{r}:{r+1}]")); names_loop.append('end')
            out.append(raw("  s_memrealtime s[98:99]"))
            out.append(raw("  s_waitcnt lgkmcnt(0)"))
            for k in range(len(names_loop)): out.append(raw(f"  v_writelane_b32 v253, s{LOOP_S[k]}, {k}"))
            out.append(raw("  v_writelane_b32 v253, s98, 63"))
            out.append(raw("  buffer_store_dword v253, v254, s[16:19], s101 offen"))
            out.append(raw("  s_add_u32 s101, s101, 256"))
            out.append(raw("  s_nop 1"))
            inloop = False
        if i.cls == 'label' and i.src[0] == 'L_end':
            out.append(raw("  s_memtime s[84:85]")); out.append(raw("  s_waitcnt vmcnt(0)")); out.append(raw("  s_memtime s[88:89]")); out.append(raw("  s_memrealtime s[86:87]"))
            out.append(raw("  s_waitcnt lgkmcnt(0)"))
            out.append(raw("  v_writelane_b32 v252, s84, 10")); out.append(raw("  v_writelane_b32 v252, s88, 11")); out.append(raw("  v_writelane_b32 v252, s86, 12"))
            out.append(raw("  s_getreg_b32 s84, hwreg(HW_REG_XCC_ID)"))
            out.append(raw("  s_getreg_b32 s85, hwreg(HW_REG_HW_ID)"))
            out.append(raw("  v_writelane_b32 v252, s84, 13")); out.append(raw("  v_writelane_b32 v252, s85, 14"))
            out.append(raw("  buffer_store_dword v252, v254, s[16:19], s100 offen"))
        out.append(i)
    return out, names_pro, names_loop
```

```python
import math, sys
from isa import *
import passes

DBG = {a[2:]: True for a in sys.argv if a.startswith('--')}
NAME = "standalone__modern_conv_block_convnext__vision"

LOG2E = 1.4426950408889634
GA = 2.0 * math.sqrt(2.0 / math.pi) * LOG2E
GB = GA * 0.044715
SC = GB ** (1.0 / 3.0)
GK = GA / SC
ROWB = 98304
XBYTES = 512 * ROWB

RING = 0; PAIRP = 4160; RINGP = 4 * PAIRP
W1F = 49920
RAW1 = 0
TAB = 73728
B1T = 88128
B2T = 89664
W2F = 90112
LDS_SIZE = 163840

vA, vB, vB1, vTab, vConv, vRes = V(0), V(1), V(2), V(3), V(4), V(5)
vDMA = V(6, 4); vSt = V(10); vTmp = V(11)
S2 = V(12, 2); Q2 = V(14, 2)
X = [V(16, 16), V(32, 16)]
T = V(48, 16)
ACC = V(64, 48)
CV = V(112, 48)
Z = V(160, 24)
YP = V(184, 8)
W2S = V(192, 24)
CS = V(216, 24)
IDF = V(240, 8)
W1S = V(248, 4)
SPARE = V(252, 4)

SRDX, SRDO, SRDT, SRDU = S(4, 4), S(8, 4), S(12, 4), S(16, 4)
sK, sS = S(20, 2), S(22, 2)
sInv96, sEps, sCnt, sW, sSt, sDma, sP0, sP1 = (S(i) for i in range(24, 32))
sT0, sT1, sT2, sT3 = (S(i) for i in range(32, 36))
KA = S(36, 16)
sDma2, sC0, sR0, sT4, sT5 = (S(i) for i in range(52, 57))

NR = [(j, 5) for j in range(4, 12)]
RES = {}
for j in range(12):
    for sg in range(6):
        if (j, sg) not in NR: RES[(j, sg)] = A(4 * len(RES), 4)
assert len(RES) <= 64

def w2addr(f):
    if f < 8: return vA, W2F - W1F + 1024 * f
    return vB, 1024 * (f - 8)

COST = {'valu': 4, 'trans': 8, 'perm': 8, 'dsr': 4, 'salu': 4, 'pseudo': 0, 'vst': 4, 'dma': 4, 'wait': 0, 'nop': 4}

def sched_M(mf, post, fill, pre=()):
    n = len(mf)
    gaps = {g: [] for g in range(-1, n)}
    cost = {g: 0 for g in range(-1, n)}
    for g in range(n):
        k = 0
        for i in post.get(g, []):
            c = COST[i.cls]
            if i.cls in ('salu', 'pseudo') and k == 0: c = 0
            cost[g] += c; k += 1
    need = {-1: 0}
    for g in range(n):
        L = 32 if mf[g].cls == 'M' else 16
        need[g] = L - 8 + (12 if g == n - 1 else 0)
    rest = []
    for (i, e, l) in fill:
        if l < n:
            gaps[e].append(i); cost[e] += COST[i.cls]
        else: rest.append((i, e))
    g = 0
    k = 0
    while k < len(rest):
        remc = sum(COST[i.cls] for i, _ in rest[k:])
        remneed = sum(max(0, need[x] - cost[x]) for x in range(g, n))
        extra = max(0, remc - remneed) / (n - g)
        i, e = rest[k]
        if e > g: g = e; continue
        c = COST[i.cls]
        if g == n - 1 or cost[g] < need[g] or cost[g] + c <= need[g] + extra + 0.01:
            gaps[g].append(i); cost[g] += c; k += 1
        else: g += 1
    out = list(pre) + gaps[-1]
    for g in range(n):
        out.append(mf[g]); out += post.get(g, []); out += gaps[g]
    return out

def interleave(a, b):
    if not b: return list(a)
    out = []; k = 0
    for n, x in enumerate(a):
        out.append(x)
        while k < len(b) and (k + 1) * len(a) <= (n + 1) * len(b) + 0:
            out.append(b[k]); k += 1
    out += b[k:]
    return out

def conv_reads(g, m):
    a = dsr('ds_read_b128', CS[8 * m:8 * m + 4], vTab, (m * 12 + g) * 400)
    b = dsr('ds_read_b128', CS[8 * m + 4:8 * m + 8], vConv, m * 192 + 16 * g)
    return [a, b]
def conv_mfma(g, m):
    d = CV[4 * g:4 * g + 4]
    return mfma(d, CS[8 * m:8 * m + 4], CS[8 * m + 4:8 * m + 8], 0 if m == 0 else d, big=False)
def ln_stats(g):
    p0, p1 = CV[4 * g:4 * g + 2], CV[4 * g + 2:4 * g + 4]
    if g == 0:
        return [pk('v_pk_add_f32', S2, p0, p1), pk('v_pk_mul_f32', Q2, p0, p0), pk('v_pk_fma_f32', Q2, p1, p1, Q2)]
    return [pk('v_pk_add_f32', S2, S2, p0), pk('v_pk_fma_f32', Q2, p0, p0, Q2),
            pk('v_pk_add_f32', S2, S2, p1), pk('v_pk_fma_f32', Q2, p1, p1, Q2)]
def ln_final():
    a, b, c, d = S2[0], S2[1], Q2[0], Q2[1]
    f = valu('v_fma_f32', b, a, a, b); f.mods['neg'] = [1, 0, 0]; f.text = f"  v_fma_f32 {b}, -{a}, {a}, {b}"
    o = [valu('v_add_f32', a, a, b), valu('v_add_f32', c, c, d), permswap(a, c), valu('v_add_f32', a, a, c),
         valu('v_mov_b32', c, a), permswap(a, c),
         valu('v_mul_f32', a, sInv96, a), valu('v_mul_f32', b, sInv96, c), f,
         valu('v_max_f32', b, 0, b), valu('v_add_f32', b, sEps, b), valu('v_rsq_f32', b, b),
         valu('v_sub_f32', a, 0, a),
         valu('v_mul_f32', c, sS[0], b), valu('v_mul_f32', a, a, c)]
    return o
def ln_norm():
    return [pk('v_pk_fma_f32', CV[2 * i:2 * i + 2], CV[2 * i:2 * i + 2], Q2, S2, bcast=[0, 1, 1]) for i in range(24)]
def ln_cvt():
    return [valu('v_cvt_pk_bf16_f32', Z[i], CV[2 * i], CV[2 * i + 1]) for i in range(24)]
def b1_reads(s):
    return [dsr('ds_read_b128', X[s % 2][4 * a:4 * a + 4], vB1, 4 * (32 * s + 8 * a)) for a in range(4)]
def rotate(r):
    return [valu('v_subrev_u32', vTmp, RINGP, r), valu('v_add_u32', r, 2 * RINGP, r), valu('v_min_u32', r, vTmp, r)]
def w2_reads(j):
    o = []
    for f in range(6):
        b, off = w2addr(6 * j + f)
        o.append(dsr('ds_read_b128', W2S[4 * f:4 * f + 4], b, off))
    return o
def g2_mfmas():
    return [mfma(ACC[16 * t:16 * t + 16], W2S[4 * (3 * k + t):4 * (3 * k + t) + 4], YP[4 * k:4 * k + 4], ACC[16 * t:16 * t + 16])
            for k in range(2) for t in range(3)]
def epi_cvt():
    return [valu('v_cvt_pk_bf16_f32', CV[i], ACC[2 * i], ACC[2 * i + 1]) for i in range(24)]
def epi_stores():
    ex = ' sc1' if DBG.get('sc1') else ' nt' if DBG.get('nt') else ' sc0 sc1' if DBG.get('sc01') else ' sc1 nt' if DBG.get('sc1nt') else ''
    return [bstore('buffer_store_dwordx4', CV[4 * k:4 * k + 4], vSt, SRDO, sSt, 32 * k, extra=ex) for k in range(6)]


class Phase:
    def __init__(p, ms, cg):
        p.mf = []
        for k, m_ in enumerate(ms):
            p.mf.append(m_)
            if cg is not None and k < 3: p.mf.append(conv_mfma(cg, k))
        p.M = [k for k, m_ in enumerate(p.mf) if m_.cls == 'M']
        p.S = [k for k, m_ in enumerate(p.mf) if m_.cls == 'S']
        p.post = {}; p.fl = []; p.dl = []
    def after(p, g, *l): p.post.setdefault(g, []).extend(l)
    def first(p, g, *l): p.post[g] = list(l) + p.post.get(g, [])
    def build(p):
        return sched_M(p.mf, p.post, p.dl + [(i, 0, 99) for i in p.fl])

C0 = 5
def body(first=False, last=False):
    o = []
    st = epi_stores()
    for s in range(12):
        xs, xp = X[s % 2], X[(s - 1) % 2]
        prev = not (first and s == 0)
        o.append(raw(f"  ; ---- step {s} M1"))
        cg = 2 * (s - C0) if (C0 <= s < C0 + 6 and not last) else None
        p = Phase([mfma(xs, RES.get((s, sg), W1S), Z[4 * sg:4 * sg + 4], xs) for sg in range(6)], cg)
        if (s, 5) in NR:
            p.after(p.M[0], dsr('ds_read_b128', W1S, vA, 1024 * NR.index((s, 5))))
            p.first(p.M[4], wait_for(W1S))
        if prev:
            wr = w2_reads((s - 1) % 12)
            for k in range(6): p.after(p.M[k // 2], wr[k])
            p.fl = [valu('v_rcp_f32', T[i], T[i]) for i in range(16)]
        if cg is not None:
            for m in range(3): p.after(p.S[m], *conv_reads(cg + 1, m))
        if s == 0:
            for k in range(6): p.after(p.M[3 + k // 3], dsr('ds_read_b128', CV[24 + 4 * k:28 + 4 * k], vRes, 32 * k))
        if s == 1 and not first: p.fl = interleave(p.fl, epi_cvt())
        if s == 11 and not last: p.fl = interleave(p.fl, ln_final())
        if s in (2, 3, 4) and not first: p.after(p.M[3], st[2 * (s - 2)])
        p.first(p.M[5], wait_for(W2S, CS))
        o += p.build()
        if s == 1:
            o += [dsr('ds_read_b128', ACC[4 * k:4 * k + 4], vB1, B2T - B1T + 32 * k) for k in range(12)]
        o.append(raw(f"  ; ---- step {s} Pa"))
        pa = []
        if prev: pa += [pk('v_pk_mul_f32', xp[2 * i:2 * i + 2], xp[2 * i:2 * i + 2], T[2 * i:2 * i + 2]) for i in range(8)]
        if cg is not None: pa += ln_stats(cg)
        if s == 11 and not last: pa += ln_norm()
        pa += [pk('v_pk_fma_f32', T[2 * i:2 * i + 2], xs[2 * i:2 * i + 2], xs[2 * i:2 * i + 2], sK, neg=[1, 0, 1]) for i in range(8)]
        pa += [pk('v_pk_mul_f32', T[2 * i:2 * i + 2], xs[2 * i:2 * i + 2], T[2 * i:2 * i + 2]) for i in range(8)]
        cv = [valu('v_cvt_pk_bf16_f32', YP[i], xp[2 * i], xp[2 * i + 1]) for i in range(8)] if prev else []
        pa = pa[:-3] + cv[:4] + pa[-3:]
        o += pa
        o.append(raw(f"  ; ---- step {s} M2"))
        g2 = g2_mfmas() if prev else []
        if s == 1:
            g2 = g2 + [mfma(ACC[16 * t:16 * t + 16], IDF[4 * k:4 * k + 4], CV[24 + 4 * (2 * t + k):28 + 4 * (2 * t + k)],
                            ACC[16 * t:16 * t + 16]) for k in range(2) for t in range(3)]
        cg = 2 * (s - C0) + 1 if (C0 <= s < C0 + 6 and not last) else None
        ex = [valu('v_exp_f32', T[i], T[i]) for i in range(16)]
        br = b1_reads((s + 1) % 12) if not (last and s == 11) else []
        dm = []
        if s in (0, 1) and not last:
            dm = [salu('s_mov_b32', M0, sP0 if s == 0 else sP1)]
            for k in range(4):
                d = dma(vDMA[k], SRDX, sDma if s == 0 else sDma2, 1024 * k); d.tag = 'xdma'; dm.append(d)
        if not g2:
            o += [wait_for(CV)] + br + dm[:1] + ex[:1] + dm[1:] + ex[1:]
        else:
            p = Phase(g2, cg)
            p.dl = [(c, 0, p.M[2]) for c in cv[4:]]
            for k, b in enumerate(br): p.after(p.M[1 + k // 2], b)
            if cg is not None and cg < 11:
                for m in range(3): p.after(p.S[m], *conv_reads(cg + 1, m))
            if s == C0 - 1 and not last:
                p.first(p.M[0], wait_tag('xdma'))
                for m in range(3): p.after(p.M[m], *conv_reads(0, m))
            if dm:
                p.first(p.M[0], dm[0])
                if s == 0: p.first(p.M[1], wait_for(CV))
                for k in range(4): p.after(p.M[1 + k], dm[1 + k])
            if s == 11 and not last: ex = interleave(ex, ln_cvt()) + rotate(vConv)
            if s == 2 and not last: ex = interleave(ex, rotate(vRes))
            if s in (2, 3, 4) and not first: p.after(p.M[3], st[2 * (s - 2) + 1])
            if s == 6 and not last:
                ups = [salu('s_add_u32', sDma, sDma, 4 * ROWB), salu('s_add_u32', sDma2, sDma2, 4 * ROWB),
                       salu('s_mov_b32', sT0, sP0), salu('s_add_u32', sP0, sT1, 32), salu('s_sub_u32', sT1, sP1, 0),
                       salu('s_sub_u32', sP1, sT0, 32)]
                for k, u in enumerate(ups): p.first(p.M[k], u)
            if s == 7:
                p.first(p.M[0], salu('s_mov_b32', sSt, sT2))
                p.first(p.M[1], salu('s_add_u32', sT2, sT2, 4 * ROWB))
            p.fl = ex
            p.first(p.M[-1], wait_for(X[0], X[1], CS))
            o += p.build()
        o.append(raw(f"  ; ---- step {s} Pb"))
        pb = [pk('v_pk_fma_f32', T[2 * i:2 * i + 2], T[2 * i:2 * i + 2], sS, sS) for i in range(8)]
        if cg is not None: pb = ln_stats(cg) + pb
        o += pb
    return o

def tail():
    o = [raw("  ; ---- tail")]
    xp = X[1]
    o += w2_reads(11)
    o += [valu('v_rcp_f32', T[i], T[i]) for i in range(16)]
    o += [pk('v_pk_mul_f32', xp[2 * i:2 * i + 2], xp[2 * i:2 * i + 2], T[2 * i:2 * i + 2]) for i in range(8)]
    o += [valu('v_cvt_pk_bf16_f32', YP[i], xp[2 * i], xp[2 * i + 1]) for i in range(8)]
    g = g2_mfmas()
    o += [g[0], g[3], g[1], g[4], g[2], g[5]]
    ec = epi_cvt(); st = epi_stores()
    for k in range(6):
        o += ec[4 * k:4 * k + 4] + [st[k]]
    return o

SRD = {'x': SRDX, 'dw': S(60, 4), 'w1': S(64, 4), 'b1': S(68, 4), 'w2': S(72, 4), 'b2': S(76, 4), 'g': S(80, 4), 'out': SRDO}
SIZES = {'x': XBYTES, 'dw': 1728, 'w1': 73728, 'b1': 768, 'w2': 73728, 'b2': 192, 'g': 192, 'out': XBYTES}

def prologue():
    o = []
    e = o.append
    tmp = [V(i) for i in list(range(16, 64)) + list(range(184, 192)) + list(range(248, 256))]
    def new(): return tmp.pop(0)
    def v(op, *src, d=None):
        d = d or new(); e(valu(op, d, *src)); return d
    e(scmp('s_cmp_ge_u32', S(2), 256)); e(branch('s_cbranch_scc1', 'L_end'))
    e(sload(KA, S(0, 2), 0))
    tid = v('v_mov_b32', V(0))
    lane = v('v_and_b32', 63, V(0))
    wv = v('v_lshrrev_b32', 6, V(0))
    l16 = v('v_lshlrev_b32', 4, lane)
    e(rfl(sW, wv))
    e(salu('s_lshr_b32', sR0, S(2), 4)); e(salu('s_lshl_b32', sR0, sR0, 5))
    e(salu('s_and_b32', sC0, S(2), 15)); e(salu('s_lshl_b32', sC0, sC0, 5))
    e(salu('s_lshl_b32', sT0, sW, 3)); e(salu('s_add_u32', sC0, sC0, sT0))
    sW3 = S(57); sWP = S(58); sWQ = S(59)
    e(salu('s_min_u32', sW3, sW, 2))
    e(salu('s_mul_i32', sWP, sW, PAIRP))
    e(salu('s_mul_i32', sWQ, sW, 18432))
    c8 = v('v_and_b32', 7, lane)
    b3 = v('v_bfe_u32', lane, 3, 1)
    b4 = v('v_bfe_u32', lane, 4, 1)
    b5 = v('v_lshrrev_b32', 5, lane)
    b2_ = v('v_bfe_u32', lane, 2, 1)
    lo2 = v('v_and_b32', 3, lane)
    q = v('v_lshrrev_b32', 4, lane)
    sLo, sHi, sBase = sT3, sT4, sT5
    e(scmp('s_cmp_eq_u32', sC0, 0)); e(salu('s_cselect_b32', sLo, 12, 0))
    e(scmp('s_cmp_eq_u32', sC0, 504)); e(salu('s_cselect_b32', sHi, 12, 0))
    e(salu('s_add_u32', sHi, sHi, sLo)); e(salu('s_sub_u32', sHi, 120, sHi))
    e(salu('s_mul_i32', sBase, sC0, 192)); e(salu('s_add_u32', sBase, sBase, 4096 - 192))
    big = v('v_mov_b32', 0x80000000)
    t0, t1, t2 = new(), new(), new()
    for p in range(4):
        if p == 0:
            v('v_mov_b32', lane, d=t0); v('v_mov_b32', 0, d=t1)
        elif p == 1:
            v('v_add_u32', 64, lane, d=t0)
            v('v_subrev_u32', 57, lane, d=t2)
            e(vcmp('v_cmp_le_u32', 57, lane))
            v('v_mov_b32', ROWB - 1024, d=t1)
            e(valu('v_cndmask_b32', t0, t0, t2))
            v('v_mov_b32', -1024, d=t2)
            e(valu('v_cndmask_b32', t1, t2, t1))
        else:
            v('v_add_u32', 64 * p - 121, lane, d=t0); v('v_mov_b32', ROWB - 1024 * p, d=t1)
        v('v_lshl_add_u32', t0, 4, t1, d=t1)
        v('v_add_u32', sBase, t1, d=t1)
        v('v_subrev_u32', sLo, t0, d=t0)
        e(vcmp('v_cmp_gt_u32', sHi, t0))
        e(valu('v_cndmask_b32', vDMA[p], big, t1))
    e(waitcnt(lgkm=0))
    for n, k in enumerate(['x', 'dw', 'w1', 'b1', 'w2', 'b2', 'g', 'out']):
        r = SRD[k]
        e(salu('s_mov_b32', r[0], KA[2 * n])); e(salu('s_mov_b32', r[1], KA[2 * n + 1]))
        e(salu('s_mov_b32', r[2], SIZES[k])); e(salu('s_mov_b32', r[3], 0x00020000))
    e(raw("  ; P:karg"))
    for i in range(18):
        if i % 4 == 0:
            e(salu('s_add_u32', sT0, sWQ, 1024 * i)); e(salu('s_add_u32', M0, sT0, W2F))
        d = dma(l16, SRD['w2'], sT0, 1024 * (i % 4)); d.tag = 'raw2'; e(d)
    gch = v('v_lshlrev_b32', 4, b4)
    v('v_lshl_add_u32', b2_, 3, gch, d=gch); v('v_lshl_add_u32', b3, 2, gch, d=gch); v('v_add_u32', gch, lo2, d=gch)
    v('v_lshlrev_b32', 1, gch, d=gch)
    G = [new(), new(), new()]
    for t in range(3): e(bload('buffer_load_ushort', G[t], gch, SRD['g'], 0, 64 * t))
    e(salu('s_lshl_b32', sT0, sW3, 6))
    g2, b2v = new(), new()
    e(bload('buffer_load_ushort', g2, gch, SRD['g'], sT0)); e(bload('buffer_load_ushort', b2v, gch, SRD['b2'], sT0))
    l4 = v('v_lshlrev_b32', 2, lane)
    e(salu('s_lshl_b32', sT1, sW3, 8))
    b1v = new(); e(bload('buffer_load_dword', b1v, l4, SRD['b1'], sT1))
    tid2 = v('v_lshlrev_b32', 1, tid)
    DW = [new() for _ in range(4)]
    for kr in range(3): e(bload('buffer_load_ushort', DW[kr], tid2, SRD['dw'], 0, 576 * kr))
    l31 = v('v_and_b32', 31, lane)
    idxb = v('v_lshlrev_b32', 1, l31)
    e(salu('s_mul_i32', sT2, sW3, 576))
    e(bload('buffer_load_ushort', DW[3], idxb, SRD['dw'], sT2, 512))
    e(salu('s_mul_i32', sT0, sR0, ROWB))
    for p in range(4):
        e(salu('s_add_u32', sT1, sT0, (-ROWB - 4096 + 1024 * p) & 0xffffffff))
        v('v_add_u32', sT1, vDMA[p], d=t0)
        e(bload('buffer_load_dwordx4', CV[4 * p:4 * p + 4], t0, SRDX, 0))
    for k in (1, 2):
        e(salu('s_add_u32', sT1, sT0, (2 * k - 1) * ROWB - 4096))
        for p in range(4):
            e(bload('buffer_load_dwordx4', CV[16 * k + 4 * p:16 * k + 4 * p + 4], vDMA[p], SRDX, sT1, 1024 * p))
    e(salu('s_add_u32', sDma, sT0, 5 * ROWB - 4096)); e(salu('s_add_u32', sDma2, sT0, 7 * ROWB - 4096))
    r1 = v('v_lshlrev_b32', 2, b4)
    v('v_xor_b32', r1, c8, d=r1); v('v_lshlrev_b32', 4, r1, d=r1)
    l8 = v('v_lshrrev_b32', 3, lane)
    e(valu('v_mov_b32', t1, 768)); v('v_mad_u32_u24', l8, t1, r1, d=r1)
    e(salu('s_mul_i32', sT3, sW, 3072))
    for jj in range(6):
        for k in range(3):
            e(salu('s_add_u32', sT1, sWQ, k * 6144 + jj * 128))
            e(salu('s_add_u32', M0, sT3, RAW1 + jj * 12288 + k * 1024))
            d = dma(r1, SRD['w1'], sT1); d.tag = 'raw1'; e(d)
    if DBG.get('arr'):
        e(raw("  ; P:issued")); e(wait_tag('raw2')); e(raw("  ; P:a_raw2")); e(wait_for(DW[3])); e(raw("  ; P:a_small"))
        e(wait_for(CV)); e(raw("  ; P:a_x")); e(wait_tag('raw1')); e(raw("  ; P:a_raw1"))
    for r, val in ((sK[0], GK), (sK[1], GK), (sS[0], SC), (sS[1], SC), (sInv96, 1.0 / 96), (sEps, 1e-5)):
        e(salu('s_mov_b32', r, f2u(val)))
    rel = new()
    def ring_addr(dst, iota, extra):
        kk = v('v_lshrrev_b32', 1, iota, d=t0)
        e(valu('v_mov_b32', t1, RINGP)); v('v_mul_u32_u24', kk, t1, d=rel)
        v('v_and_b32', 1, kk, d=t0); v('v_lshl_add_u32', t0, 5, rel, d=rel)
        v('v_and_b32', 1, iota, d=t0); e(valu('v_mov_b32', t1, 121 * 16)); v('v_mad_u32_u24', t0, t1, rel, d=rel)
        e(valu('v_mov_b32', t1, 192)); v('v_mad_u32_u24', c8, t1, rel, d=rel)
        if extra is not None: v('v_add_u32', rel, extra, d=rel)
        v('v_add_u32', sWP, rel, d=dst)
    io = v('v_lshl_add_u32', b3, 1, q)
    ring_addr(vConv, io, None)
    prow = v('v_lshl_add_u32', b3, 1, b4)
    v('v_add_u32', 1, prow, d=io)
    h16 = v('v_lshlrev_b32', 4, b5)
    ex = v('v_add_u32', 192, h16)
    ring_addr(vRes, io, ex)
    e(valu('v_mov_b32', t1, ROWB)); v('v_mad_u32_u24', prow, t1, h16, d=vSt)
    v('v_add_u32', sC0, c8, d=t0); e(valu('v_mov_b32', t1, 192)); v('v_mad_u32_u24', t0, t1, vSt, d=vSt)
    v('v_add_u32', B1T, h16, d=vB1)
    v('v_sub_u32', q, b2_, d=t0)
    v('v_lshl_add_u32', b3, 2, lo2, d=t1)
    v('v_lshl_add_u32', t0, 3, t1, d=t1)
    e(vcmp('v_cmp_gt_u32', 3, t0))
    v('v_mov_b32', 24, d=t2)
    e(valu('v_cndmask_b32', t1, t2, t1))
    v('v_lshlrev_b32', 4, t1, d=t1); v('v_add_u32', TAB, t1, d=vTab)
    v('v_lshlrev_b32', 2, b4, d=t0); v('v_lshl_add_u32', b3, 1, t0, d=t0)
    v('v_bfe_u32', lane, 1, 1, d=t1); v('v_add_u32', t0, t1, d=t0)
    v('v_and_b32', 1, lane, d=t1); v('v_lshlrev_b32', 4, t1, d=t1)
    shl = v('v_mov_b32', t1)
    v('v_mov_b32', 0x3f80, d=t2); v('v_lshlrev_b32', t1, t2, d=t1)
    e(vcmp('v_cmp_eq_u32', b2_, b5))
    e(valu('v_cndmask_b32', t1, 0, t1))
    for i in range(8):
        e(vcmp('v_cmp_eq_u32', i, t0)); e(valu('v_cndmask_b32', IDF[i], 0, t1))
    MK = W2S[0:4]; DT = W2S[4:8]; ZR = W2S[8:12]
    v('v_mov_b32', 0xffff, d=t2); v('v_lshlrev_b32', shl, t2, d=t2)
    v('v_bfe_u32', lane, 1, 2, d=t0)
    for i in range(4):
        e(vcmp('v_cmp_eq_u32', i, t0)); e(valu('v_cndmask_b32', MK[i], 0, t2))
        e(valu('v_mov_b32', ZR[i], 0))
    e(valu('v_mov_b32', t1, 400))
    v('v_min_u32', 35, lane, d=t0); v('v_mul_u32_u24', t0, t1, d=t0); v('v_add_u32', TAB + 384, t0, d=t0)
    e(dsw('ds_write_b128', t0, ZR))
    ta = v('v_lshrrev_b32', 3, tid); v('v_mul_u32_u24', ta, t1, d=ta); v('v_lshl_add_u32', c8, 4, ta, d=ta)
    v('v_add_u32', TAB, ta, d=ta)
    tb = v('v_lshrrev_b32', 3, l31); v('v_mul_u32_u24', tb, t1, d=tb); v('v_lshl_add_u32', c8, 4, tb, d=tb)
    e(salu('s_lshl_b32', sT0, sW3, 7)); e(salu('s_add_u32', sT0, sT0, TAB + 32 * 400))
    v('v_add_u32', sT0, tb, d=tb)
    for k in range(4):
        D = W2S[8 + 4 * k:12 + 4 * k] if k else DT
        v('v_lshl_or_b32', DW[k], 16, DW[k], d=DW[k])
        for i in range(4): e(valu('v_and_b32', D[i], MK[i], DW[k]))
        e(dsw('ds_write_b128', ta if k < 3 else tb, D, 128 * k if k < 3 else 0))
    PB = CS[0:2]
    v('v_lshlrev_b32', 16, b1v, d=PB[0]); v('v_and_b32', 0xffff0000, b1v, d=PB[1])
    e(pk('v_pk_mul_f32', PB, PB, sS))
    e(salu('s_lshl_b32', sT0, sW3, 9)); e(salu('s_add_u32', sT0, sT0, B1T))
    v('v_lshlrev_b32', 3, lane, d=t0); v('v_add_u32', sT0, t0, d=t0)
    e(dsw('ds_write_b64', t0, PB))
    v('v_lshlrev_b32', 16, g2, d=g2); v('v_lshlrev_b32', 16, b2v, d=b2v); v('v_mul_f32', g2, b2v, d=g2)
    e(salu('s_lshl_b32', sT0, sW3, 7)); e(salu('s_add_u32', sT0, sT0, B2T))
    v('v_lshlrev_b32', 2, l31, d=t0); v('v_add_u32', sT0, t0, d=t0)
    e(dsw('ds_write_b32', t0, g2))
    GP = [CS[2 + 2 * t:4 + 2 * t] for t in range(3)]
    for t in range(3): v('v_lshlrev_b32', 16, G[t], d=GP[t][0])
    rr = v('v_bfe_u32', lane, 2, 2)
    hr = v('v_lshl_add_u32', b5, 2, rr)
    a2 = new()
    e(valu('v_mov_b32', t1, 192)); v('v_mul_u32_u24', hr, t1, d=a2)
    v('v_lshl_add_u32', b4, 5, a2, d=a2)
    v('v_and_b32', 1, lane, d=t0); v('v_lshl_add_u32', t0, 4, a2, d=a2)
    v('v_bfe_u32', lane, 1, 1, d=t0); v('v_lshl_add_u32', t0, 3, a2, d=a2)
    e(salu('s_add_u32', sT0, sWQ, W2F))
    v('v_add_u32', sT0, a2, d=a2)
    w2w = v('v_add_u32', sT0, l16)
    FR = [ACC[0:24], ACC[24:48], Z[0:24]]
    if not DBG.get('arr'): e(raw("  ; P:tables"))
    e(wait_tag('raw2'))
    if not DBG.get('arr'): e(raw("  ; P:raw2wait"))
    for jl in range(3):
        for k in range(2):
            for t in range(3):
                for u in range(2):
                    f = 3 * k + t
                    e(dsr('ds_read_b64_tr_b16', FR[jl][4 * f + 2 * u:4 * f + 2 * u + 2], a2, jl * 6144 + (16 * k + 8 * u) * 192 + 64 * t))
    UP = CS[8:24]
    for jl in range(3):
        e(wait_for(FR[jl]))
        for f in range(6):
            t = f % 3
            fr = FR[jl][4 * f:4 * f + 4]
            up = UP[8 * (f % 2):8 * (f % 2) + 8]
            for d in range(4):
                e(valu('v_lshlrev_b32', up[2 * d], 16, fr[d])); e(valu('v_and_b32', up[2 * d + 1], 0xffff0000, fr[d]))
            for d in range(4): e(pk('v_pk_mul_f32', up[2 * d:2 * d + 2], up[2 * d:2 * d + 2], GP[t], bcast=[0, 1]))
            for d in range(4): e(valu('v_cvt_pk_bf16_f32', fr[d], up[2 * d], up[2 * d + 1]))
            e(dsw('ds_write_b128', w2w, fr, jl * 6144 + f * 1024))
    a1 = [new(), new(), new(), new()]
    v('v_lshlrev_b32', 7, hr, d=a1[0]); v('v_lshl_add_u32', b4, 5, a1[0], d=a1[0]); v('v_lshl_add_u32', lo2, 3, a1[0], d=a1[0])
    v('v_lshl_add_u32', b3, 6, a1[0], d=a1[0])
    v('v_xor_b32', 64, a1[0], d=a1[1])
    v('v_add_u32', 36864, a1[0], d=a1[2]); v('v_add_u32', 36864, a1[1], d=a1[3])
    e(salu('s_mul_i32', sT0, sW, 12288))
    an = [v('v_add_u32', sT0, a1[0]), v('v_add_u32', sT0, a1[1])]
    if not DBG.get('arr'): e(raw("  ; P:w2fold"))
    e(wait_tag('raw1'))
    e(barrier())
    if not DBG.get('arr'): e(raw("  ; P:raw1bar"))
    NRS = W2S[0:8]
    assert NR == [(j, 5) for j in range(4, 12)]
    for jo in range(2):
        for u in range(2):
            e(dsr('ds_read_b64_tr_b16', NRS[4 * jo + 2 * u:4 * jo + 2 * u + 2], an[jo], RAW1 + 2 * 12288 + (80 + 8 * u) * 128))
    for (j, sg), r in RES.items():
        jj, jo = j // 2, j % 2
        for u in range(2):
            e(dsr('ds_read_b64_tr_b16', r[2 * u:2 * u + 2], a1[jo + 2 * (jj >= 3)], RAW1 + (jj % 3) * 12288 + (16 * sg + 8 * u) * 128))
    v('v_add_u32', W1F, l16, d=vA); v('v_add_u32', 98304, l16, d=vB)
    e(salu('s_lshl_b32', sT0, sW, 11))
    wa = v('v_add_u32', sT0, vA)
    ra = v('v_add_u32', sWP, l16)
    e(barrier())
    for jo in range(2): e(dsw('ds_write_b128', wa, NRS[4 * jo:4 * jo + 4], 1024 * jo))
    for k in range(3):
        for p in range(4):
            e(dsw('ds_write_b128', ra, CV[16 * k + 4 * p:16 * k + 4 * p + 4], k * RINGP + 32 * (k & 1) + 1024 * p))
    if not DBG.get('arr'): e(raw("  ; P:w1rd"))
    e(salu('s_add_u32', sP0, sWP, 32)); e(salu('s_add_u32', sP1, sWP, RINGP)); e(salu('s_add_u32', sT1, sWP, 2 * RINGP))
    e(salu('s_mul_i32', sT2, sR0, ROWB)); e(salu('s_mov_b32', sSt, 0x80000000))
    for m in range(3): o.extend(conv_reads(0, m))
    for g in range(12):
        for m in range(3):
            e(conv_mfma(g, m))
            if g < 11: o.extend(conv_reads(g + 1, m))
    o.extend(b1_reads(0))
    for g in range(12): o.extend(ln_stats(g))
    o.extend(ln_final()); o.extend(ln_norm()); o.extend(ln_cvt()); o.extend(rotate(vConv))
    e(barrier())
    e(raw("  ; P:conv0"))
    return o

def build(peel=False):
    o = prologue()
    if peel:
        o += body(first=True)
        o.append(salu('s_mov_b32', sCnt, 6))
    else:
        o.append(salu('s_mov_b32', sCnt, 8))
    o.append(raw("  .p2align 6"))
    o.append(label('L_loop'))
    b = body()
    o += b
    o += [salu('s_sub_u32', sCnt, sCnt, 1), scmp('s_cmp_lg_u32', sCnt, 0), branch('s_cbranch_scc1', 'L_loop')]
    if peel: o += body(last=True)
    o += tail()
    o.append(label('L_end'))
    o.append(endpgm())
    o = passes.insert_waits(o)
    o = passes.fix_hazards(o)
    return o

HEAD = """; Kernarg layout (80 bytes, ptrs only, base s[0:1]): x, dw, w1, b1, w2, b2, gamma, out, debug, ws
; @launch grid=(256,1,1) block=(256,1,1) lds=163840
.amdgcn_target "amdgcn-amd-amdhsa--gfx950"
.text
.globl {n}_kernel
.p2align 8
.type {n}_kernel,@function
{n}_kernel:
"""
FOOT = """.section .rodata,"a"
.p2align 6
.amdhsa_kernel {n}_kernel
  .amdhsa_next_free_vgpr 512
  .amdhsa_next_free_sgpr 102
  .amdhsa_accum_offset 256
  .amdhsa_group_segment_fixed_size 0
  .amdhsa_kernarg_size 80
  .amdhsa_user_sgpr_count 2
  .amdhsa_user_sgpr_kernarg_segment_ptr 1
  .amdhsa_system_sgpr_workgroup_id_x 1
.end_amdhsa_kernel
"""
def emit(ins):
    return HEAD.format(n=NAME) + "\n".join(str(i) for i in ins) + "\n" + FOOT.format(n=NAME)

if __name__ == '__main__':
    peel = '--peel' in sys.argv
    ins = build(peel)
    out = [a for a in sys.argv[1:] if not a.startswith('--')]
    path = out[0] if out else f"/code/{NAME}.s"
    if '--prof' in sys.argv:
        import prof, json
        marks = ('M1', 'M2') if not DBG.get('coarse') else (' 0 M1',)
        if DBG.get('fine'): marks = tuple(f" {s_} {p_}" for s_ in (0, 1, 2, 3, 6, 11) for p_ in ('M1', 'Pa', 'M2', 'Pb')) + (' 4 M1', ' 7 M1')
        a = next(n for n, i in enumerate(ins) if i.cls == 'label' and i.src[0] == 'L_loop')
        b = next(n for n, i in enumerate(ins) if i.cls == 'branch' and i.src[0] == 'L_loop')
        tr = []; passes.cost_sim(ins[a:b + 1], tr)
        tt = [t for t, i in tr if i.cls == 'raw' and i.text.startswith('  ; ---- step') and i.text.endswith(marks)] + [tr[-3][0]]
        pi, np_, nl = prof.instrument(ins, marks)
        if not DBG.get('noalign'): pi = passes.align8(pi, verbose=True)
        open(path, 'w').write(emit(pi))
        json.dump({'pro': np_, 'loop': nl, 'iters': 6 if peel else 8, 'est': [y - x for x, y in zip(tt, tt[1:])]}, open(path[:-2] + '.json', 'w'))
    else:
        if not DBG.get('noalign'): ins = passes.align8(ins, verbose=True)
        open(path, 'w').write(emit(ins))
    a = next(n for n, i in enumerate(ins) if i.cls == 'label' and i.src[0] == 'L_loop')
    b = next(n for n, i in enumerate(ins) if i.cls == 'branch' and i.src[0] == 'L_loop')
    print("insts", len(ins), "prologue cost", passes.cost_sim(ins[:a]), "loop cost", passes.cost_sim(ins[a:b + 1]), "tail", passes.cost_sim(ins[b + 1:]))
    print("auto waits in loop:", sum(1 for i in ins[a:b] if i.note == 'auto'), "hazard nops in loop:", sum(1 for i in ins[a:b] if i.note and 'hazard' in i.note))
```

```python
import math, sys
from isa import *
import passes

DBG = {a[2:]: True for a in sys.argv if a.startswith('--')}
NAME = "standalone__modern_conv_block_convnext__vision"

LOG2E = 1.4426950408889634
GA = 2.0 * math.sqrt(2.0 / math.pi) * LOG2E
GB = GA * 0.044715
SC = GB ** (1.0 / 3.0)
GK = GA / SC
ROWB = 98304
XBYTES = 512 * ROWB

RING = 0; PAIRP = 4160; RINGP = 4 * PAIRP
W1F = 49920
RAW1 = 0
TAB = 73728
B1T = 88128
B2T = 89664
W2F = 90112
LDS_SIZE = 163840

vA, vB, vB1, vTab, vConv, vRes = V(0), V(1), V(2), V(3), V(4), V(5)
vDMA = V(6, 4); vSt = V(10); vTmp = V(11)
S2 = V(12, 2); Q2 = V(14, 2)
X = [V(16, 16), V(32, 16)]
T = V(48, 16)
ACC = V(64, 48)
CV = V(112, 48)
Z = V(160, 24)
YP = V(184, 8)
W2S = V(192, 24)
CS = V(216, 24)
IDF = V(240, 8)
W1S = V(248, 4)
SPARE = V(252, 4)

SRDX, SRDO, SRDT, SRDU = S(4, 4), S(8, 4), S(12, 4), S(16, 4)
sK, sS = S(20, 2), S(22, 2)
sInv96, sEps, sCnt, sW, sSt, sDma, sP0, sP1 = (S(i) for i in range(24, 32))
sT0, sT1, sT2, sT3 = (S(i) for i in range(32, 36))
KA = S(36, 16)
sDma2, sC0, sR0, sT4, sT5 = (S(i) for i in range(52, 57))

NR = [(j, 5) for j in range(4, 12)]
RES = {}
for j in range(12):
    for sg in range(6):
        if (j, sg) not in NR: RES[(j, sg)] = A(4 * len(RES), 4)
assert len(RES) <= 64

def w2addr(f):
    if f < 8: return vA, W2F - W1F + 1024 * f
    return vB, 1024 * (f - 8)

COST = {'valu': 4, 'trans': 8, 'perm': 8, 'dsr': 4, 'salu': 4, 'pseudo': 0, 'vst': 4, 'dma': 4, 'wait': 0, 'nop': 4}

def sched_M(mf, post, fill, pre=()):
    n = len(mf)
    gaps = {g: [] for g in range(-1, n)}
    cost = {g: 0 for g in range(-1, n)}
    for g in range(n):
        k = 0
        for i in post.get(g, []):
            c = COST[i.cls]
            if i.cls in ('salu', 'pseudo') and k == 0: c = 0
            cost[g] += c; k += 1
    need = {-1: 0}
    for g in range(n):
        L = 32 if mf[g].cls == 'M' else 16
        need[g] = L - 8 + (12 if g == n - 1 else 0)
    rest = []
    for (i, e, l) in fill:
        if l < n:
            gaps[e].append(i); cost[e] += COST[i.cls]
        else: rest.append((i, e))
    g = 0
    k = 0
    while k < len(rest):
        remc = sum(COST[i.cls] for i, _ in rest[k:])
        remneed = sum(max(0, need[x] - cost[x]) for x in range(g, n))
        extra = max(0, remc - remneed) / (n - g)
        i, e = rest[k]
        if e > g: g = e; continue
        c = COST[i.cls]
        if g == n - 1 or cost[g] < need[g] or cost[g] + c <= need[g] + extra + 0.01:
            gaps[g].append(i); cost[g] += c; k += 1
        else: g += 1
    out = list(pre) + gaps[-1]
    for g in range(n):
        out.append(mf[g]); out += post.get(g, []); out += gaps[g]
    return out

def interleave(a, b):
    if not b: return list(a)
    out = []; k = 0
    for n, x in enumerate(a):
        out.append(x)
        while k < len(b) and (k + 1) * len(a) <= (n + 1) * len(b) + 0:
            out.append(b[k]); k += 1
    out += b[k:]
    return out

def conv_reads(g, m):
    a = dsr('ds_read_b128', CS[8 * m:8 * m + 4], vTab, (m * 12 + g) * 400)
    b = dsr('ds_read_b128', CS[8 * m + 4:8 * m + 8], vConv, m * 192 + 16 * g)
    return [a, b]
def conv_mfma(g, m):
    d = CV[4 * g:4 * g + 4]
    return mfma(d, CS[8 * m:8 * m + 4], CS[8 * m + 4:8 * m + 8], 0 if m == 0 else d, big=False)
def ln_stats(g):
    p0, p1 = CV[4 * g:4 * g + 2], CV[4 * g + 2:4 * g + 4]
    if g == 0:
        return [pk('v_pk_add_f32', S2, p0, p1), pk('v_pk_mul_f32', Q2, p0, p0), pk('v_pk_fma_f32', Q2, p1, p1, Q2)]
    return [pk('v_pk_add_f32', S2, S2, p0), pk('v_pk_fma_f32', Q2, p0, p0, Q2),
            pk('v_pk_add_f32', S2, S2, p1), pk('v_pk_fma_f32', Q2, p1, p1, Q2)]
def ln_final():
    a, b, c, d = S2[0], S2[1], Q2[0], Q2[1]
    f = valu('v_fma_f32', b, a, a, b); f.mods['neg'] = [1, 0, 0]; f.text = f"  v_fma_f32 {b}, -{a}, {a}, {b}"
    o = [valu('v_add_f32', a, a, b), valu('v_add_f32', c, c, d), permswap(a, c), valu('v_add_f32', a, a, c),
         valu('v_mov_b32', c, a), permswap(a, c),
         valu('v_mul_f32', a, sInv96, a), valu('v_mul_f32', b, sInv96, c), f,
         valu('v_max_f32', b, 0, b), valu('v_add_f32', b, sEps, b), valu('v_rsq_f32', b, b),
         valu('v_sub_f32', a, 0, a),
         valu('v_mul_f32', c, sS[0], b), valu('v_mul_f32', a, a, c)]
    return o
def ln_norm():
    return [pk('v_pk_fma_f32', CV[2 * i:2 * i + 2], CV[2 * i:2 * i + 2], Q2, S2, bcast=[0, 1, 1]) for i in range(24)]
def ln_cvt():
    return [valu('v_cvt_pk_bf16_f32', Z[i], CV[2 * i], CV[2 * i + 1]) for i in range(24)]
def b1_reads(s):
    return [dsr('ds_read_b128', X[s % 2][4 * a:4 * a + 4], vB1, 4 * (32 * s + 8 * a)) for a in range(4)]
def rotate(r):
    return [valu('v_subrev_u32', vTmp, RINGP, r), valu('v_add_u32', r, 2 * RINGP, r), valu('v_min_u32', r, vTmp, r)]
def w2_reads(j):
    o = []
    for f in range(6):
        b, off = w2addr(6 * j + f)
        o.append(dsr('ds_read_b128', W2S[4 * f:4 * f + 4], b, off))
    return o
def g2_mfmas():
    return [mfma(ACC[16 * t:16 * t + 16], W2S[4 * (3 * k + t):4 * (3 * k + t) + 4], YP[4 * k:4 * k + 4], ACC[16 * t:16 * t + 16])
            for k in range(2) for t in range(3)]
def epi_cvt():
    return [valu('v_cvt_pk_bf16_f32', CV[i], ACC[2 * i], ACC[2 * i + 1]) for i in range(24)]
def epi_stores():
    ex = ' sc1' if DBG.get('sc1') else ' nt' if DBG.get('nt') else ' sc0 sc1' if DBG.get('sc01') else ' sc1 nt' if DBG.get('sc1nt') else ''
    return [bstore('buffer_store_dwordx4', CV[4 * k:4 * k + 4], vSt, SRDO, sSt, 32 * k, extra=ex) for k in range(6)]


class Phase:
    def __init__(p, ms, cg):
        p.mf = []
        for k, m_ in enumerate(ms):
            p.mf.append(m_)
            if cg is not None and k < 3: p.mf.append(conv_mfma(cg, k))
        p.M = [k for k, m_ in enumerate(p.mf) if m_.cls == 'M']
        p.S = [k for k, m_ in enumerate(p.mf) if m_.cls == 'S']
        p.post = {}; p.fl = []; p.dl = []
    def after(p, g, *l): p.post.setdefault(g, []).extend(l)
    def first(p, g, *l): p.post[g] = list(l) + p.post.get(g, [])
    def build(p):
        return sched_M(p.mf, p.post, p.dl + [(i, 0, 99) for i in p.fl])

C0 = 5
def body(first=False, last=False):
    o = []
    st = epi_stores()
    for s in range(12):
        xs, xp = X[s % 2], X[(s - 1) % 2]
        prev = not (first and s == 0)
        o.append(raw(f"  ; ---- step {s} M1"))
        cg = 2 * (s - C0) if (C0 <= s < C0 + 6 and not last) else None
        p = Phase([mfma(xs, RES.get((s, sg), W1S), Z[4 * sg:4 * sg + 4], xs) for sg in range(6)], cg)
        if (s, 5) in NR:
            p.after(p.M[0], dsr('ds_read_b128', W1S, vA, 1024 * NR.index((s, 5))))
            p.first(p.M[4], wait_for(W1S))
        if prev:
            wr = w2_reads((s - 1) % 12)
            for k in range(6): p.after(p.M[k // 2], wr[k])
            p.fl = [valu('v_rcp_f32', T[i], T[i]) for i in range(16)]
        if cg is not None:
            for m in range(3): p.after(p.S[m], *conv_reads(cg + 1, m))
        if s == 0:
            for k in range(6): p.after(p.M[3 + k // 3], dsr('ds_read_b128', CV[24 + 4 * k:28 + 4 * k], vRes, 32 * k))
        if s == 1 and not first: p.fl = interleave(p.fl, epi_cvt())
        if s == 11 and not last: p.fl = interleave(p.fl, ln_final())
        if s in (2, 3, 4) and not first: p.after(p.M[3], st[2 * (s - 2)])
        p.first(p.M[5], wait_for(W2S, CS))
        o += p.build()
        if s == 1:
            o += [dsr('ds_read_b128', ACC[4 * k:4 * k + 4], vB1, B2T - B1T + 32 * k) for k in range(12)]
        o.append(raw(f"  ; ---- step {s} Pa"))
        pa = []
        if prev: pa += [pk('v_pk_mul_f32', xp[2 * i:2 * i + 2], xp[2 * i:2 * i + 2], T[2 * i:2 * i + 2]) for i in range(8)]
        if cg is not None: pa += ln_stats(cg)
        if s == 11 and not last: pa += ln_norm()
        pa += [pk('v_pk_fma_f32', T[2 * i:2 * i + 2], xs[2 * i:2 * i + 2], xs[2 * i:2 * i + 2], sK, neg=[1, 0, 1]) for i in range(8)]
        pa += [pk('v_pk_mul_f32', T[2 * i:2 * i + 2], xs[2 * i:2 * i + 2], T[2 * i:2 * i + 2]) for i in range(8)]
        cv = [valu('v_cvt_pk_bf16_f32', YP[i], xp[2 * i], xp[2 * i + 1]) for i in range(8)] if prev else []
        pa = pa[:-3] + cv[:4] + pa[-3:]
        o += pa
        o.append(raw(f"  ; ---- step {s} M2"))
        g2 = g2_mfmas() if prev else []
        if s == 1:
            g2 = g2 + [mfma(ACC[16 * t:16 * t + 16], IDF[4 * k:4 * k + 4], CV[24 + 4 * (2 * t + k):28 + 4 * (2 * t + k)],
                            ACC[16 * t:16 * t + 16]) for k in range(2) for t in range(3)]
        cg = 2 * (s - C0) + 1 if (C0 <= s < C0 + 6 and not last) else None
        ex = [valu('v_exp_f32', T[i], T[i]) for i in range(16)]
        br = b1_reads((s + 1) % 12) if not (last and s == 11) else []
        dm = []
        if s in (0, 1) and not last:
            dm = [salu('s_mov_b32', M0, sP0 if s == 0 else sP1)]
            for k in range(4):
                d = dma(vDMA[k], SRDX, sDma if s == 0 else sDma2, 1024 * k); d.tag = 'xdma'; dm.append(d)
        if not g2:
            o += [wait_for(CV)] + br + dm[:1] + ex[:1] + dm[1:] + ex[1:]
        else:
            p = Phase(g2, cg)
            p.dl = [(c, 0, p.M[2]) for c in cv[4:]]
            for k, b in enumerate(br): p.after(p.M[1 + k // 2], b)
            if cg is not None and cg < 11:
                for m in range(3): p.after(p.S[m], *conv_reads(cg + 1, m))
            if s == C0 - 1 and not last:
                p.first(p.M[0], wait_tag('xdma'))
                for m in range(3): p.after(p.M[m], *conv_reads(0, m))
            if dm:
                p.first(p.M[0], dm[0])
                if s == 0: p.first(p.M[1], wait_for(CV))
                for k in range(4): p.after(p.M[1 + k], dm[1 + k])
            if s == 11 and not last: ex = interleave(ex, ln_cvt()) + rotate(vConv)
            if s == 2 and not last: ex = interleave(ex, rotate(vRes))
            if s in (2, 3, 4) and not first: p.after(p.M[3], st[2 * (s - 2) + 1])
            if s == 6 and not last:
                ups = [salu('s_add_u32', sDma, sDma, 4 * ROWB), salu('s_add_u32', sDma2, sDma2, 4 * ROWB),
                       salu('s_mov_b32', sT0, sP0), salu('s_add_u32', sP0, sT1, 32), salu('s_sub_u32', sT1, sP1, 0),
                       salu('s_sub_u32', sP1, sT0, 32)]
                for k, u in enumerate(ups): p.first(p.M[k], u)
            if s == 7:
                p.first(p.M[0], salu('s_mov_b32', sSt, sT2))
                p.first(p.M[1], salu('s_add_u32', sT2, sT2, 4 * ROWB))
            p.fl = ex
            p.first(p.M[-1], wait_for(X[0], X[1], CS))
            o += p.build()
        o.append(raw(f"  ; ---- step {s} Pb"))
        pb = [pk('v_pk_fma_f32', T[2 * i:2 * i + 2], T[2 * i:2 * i + 2], sS, sS) for i in range(8)]
        if cg is not None: pb = ln_stats(cg) + pb
        o += pb
    return o

def tail():
    o = [raw("  ; ---- tail")]
    xp = X[1]
    o += w2_reads(11)
    o += [valu('v_rcp_f32', T[i], T[i]) for i in range(16)]
    o += [pk('v_pk_mul_f32', xp[2 * i:2 * i + 2], xp[2 * i:2 * i + 2], T[2 * i:2 * i + 2]) for i in range(8)]
    o += [valu('v_cvt_pk_bf16_f32', YP[i], xp[2 * i], xp[2 * i + 1]) for i in range(8)]
    g = g2_mfmas()
    o += [g[0], g[3], g[1], g[4], g[2], g[5]]
    ec = epi_cvt(); st = epi_stores()
    for k in range(6):
        o += ec[4 * k:4 * k + 4] + [st[k]]
    return o

SRD = {'x': SRDX, 'dw': S(60, 4), 'w1': S(64, 4), 'b1': S(68, 4), 'w2': S(72, 4), 'b2': S(76, 4), 'g': S(80, 4), 'out': SRDO}
SIZES = {'x': XBYTES, 'dw': 1728, 'w1': 73728, 'b1': 768, 'w2': 73728, 'b2': 192, 'g': 192, 'out': XBYTES}

def wg_origin(wg):
    if DBG.get('noremap'): return 32 * (wg >> 4), 32 * (wg & 15)
    x, i = wg & 7, wg >> 3
    return 32 * ((x >> 1) * 4 + (i >> 3)), 32 * ((x & 1) * 8 + (i & 7))

def merge(work, extra, nw, ne):
    out = []; k = 0
    for n, x in enumerate(work):
        out.append(x)
        if (n + 1) % nw == 0:
            out += extra[k:k + ne]; k += ne
    return out + extra[k:]

def prologue():
    seg = {}
    cur = []
    def e(x): cur.append(x)
    def begin(name):
        nonlocal cur
        cur = seg.setdefault(name, [])
    tmp = [V(i) for i in range(112, 184)]
    def new(): return tmp.pop(0)
    def v(op, *src, d=None):
        d = d or new(); e(valu(op, d, *src)); return d
    mark = lambda n: raw(f"  ; P:{n}")
    RAW1 = W2F
    begin('P0')
    e(scmp('s_cmp_ge_u32', S(2), 256)); e(branch('s_cbranch_scc1', 'L_end'))
    for n, k in sorted(enumerate(['x', 'dw', 'w1', 'b1', 'w2', 'b2', 'g', 'out']), key=lambda t: ['w1', 'w2', 'dw', 'g', 'b2', 'b1', 'x', 'out'].index(t[1])):
        e(sload(SRD[k][0:2], S(0, 2), 8 * n))
    tid = v('v_mov_b32', V(0))
    lane = v('v_and_b32', 63, V(0))
    wv = v('v_lshrrev_b32', 6, V(0))
    l16 = v('v_lshlrev_b32', 4, lane)
    e(rfl(sW, wv))
    for k in SRD:
        e(salu('s_mov_b32', SRD[k][2], SIZES[k])); e(salu('s_mov_b32', SRD[k][3], 0x00020000))
    if DBG.get('noremap'):
        e(salu('s_lshr_b32', sR0, S(2), 4)); e(salu('s_lshl_b32', sR0, sR0, 5))
        e(salu('s_and_b32', sC0, S(2), 15)); e(salu('s_lshl_b32', sC0, sC0, 5))
    else:
        e(salu('s_and_b32', sR0, S(2), 6)); e(salu('s_lshl_b32', sR0, sR0, 1)); e(salu('s_lshr_b32', sT0, S(2), 6))
        e(salu('s_add_u32', sR0, sR0, sT0)); e(salu('s_lshl_b32', sR0, sR0, 5))
        e(salu('s_and_b32', sC0, S(2), 1)); e(salu('s_lshl_b32', sC0, sC0, 8)); e(salu('s_and_b32', sT0, S(2), 56))
        e(salu('s_lshl_b32', sT0, sT0, 2)); e(salu('s_add_u32', sC0, sC0, sT0))
    e(salu('s_lshl_b32', sT0, sW, 3)); e(salu('s_add_u32', sC0, sC0, sT0))
    sW3 = S(57); sWP = S(58); sWQ = S(59)
    sU = [S(36 + i) for i in range(16)]
    e(salu('s_min_u32', sW3, sW, 2))
    e(salu('s_mul_i32', sWP, sW, PAIRP))
    e(salu('s_mul_i32', sWQ, sW, 18432))
    sPF = sU[0]
    e(salu('s_lshl_b32', sT0, S(2), 2)); e(salu('s_add_u32', sT0, sT0, sW))
    e(salu('s_mul_i32', sT1, sT0, 3641)); e(salu('s_lshr_b32', sT1, sT1, 16)); e(salu('s_mul_i32', sT1, sT1, 18))
    e(salu('s_sub_u32', sPF, sT0, sT1)); e(salu('s_lshl_b32', sPF, sPF, 12))
    l64 = v('v_lshlrev_b32', 6, lane)
    c8 = v('v_and_b32', 7, lane)
    b3 = v('v_bfe_u32', lane, 3, 1)
    b4 = v('v_bfe_u32', lane, 4, 1)
    b5 = v('v_lshrrev_b32', 5, lane)
    b2_ = v('v_bfe_u32', lane, 2, 1)
    lo2 = v('v_and_b32', 3, lane)
    q = v('v_lshrrev_b32', 4, lane)
    gch = v('v_lshlrev_b32', 4, b4)
    v('v_lshl_add_u32', b2_, 3, gch, d=gch); v('v_lshl_add_u32', b3, 2, gch, d=gch); v('v_add_u32', gch, lo2, d=gch)
    v('v_lshlrev_b32', 1, gch, d=gch)
    l4 = v('v_lshlrev_b32', 2, lane)
    tid2 = v('v_lshlrev_b32', 1, tid)
    l31 = v('v_and_b32', 31, lane)
    idxb = v('v_lshlrev_b32', 1, l31)
    e(salu('s_lshl_b32', sU[1], sW3, 6)); e(salu('s_lshl_b32', sU[2], sW3, 8)); e(salu('s_mul_i32', sU[3], sW3, 576))
    sLo, sHi, sBase = sT3, sT4, sT5
    e(scmp('s_cmp_eq_u32', sC0, 0)); e(salu('s_cselect_b32', sLo, 12, 0))
    e(scmp('s_cmp_eq_u32', sC0, 504)); e(salu('s_cselect_b32', sHi, 12, 0))
    e(salu('s_add_u32', sHi, sHi, sLo)); e(salu('s_sub_u32', sHi, 120, sHi))
    e(salu('s_mul_i32', sBase, sC0, 192)); e(salu('s_add_u32', sBase, sBase, 4096 - 192))
    big = v('v_mov_b32', 0x80000000)
    t0, t1, t2 = new(), new(), new()
    for p in range(4):
        if p == 0:
            v('v_mov_b32', lane, d=t0); v('v_mov_b32', 0, d=t1)
        elif p == 1:
            v('v_add_u32', 64, lane, d=t0)
            v('v_subrev_u32', 57, lane, d=t2)
            e(vcmp('v_cmp_le_u32', 57, lane))
            v('v_mov_b32', ROWB - 1024, d=t1)
            e(valu('v_cndmask_b32', t0, t0, t2))
            v('v_mov_b32', -1024, d=t2)
            e(valu('v_cndmask_b32', t1, t2, t1))
        else:
            v('v_add_u32', 64 * p - 121, lane, d=t0); v('v_mov_b32', ROWB - 1024 * p, d=t1)
        v('v_lshl_add_u32', t0, 4, t1, d=t1)
        v('v_add_u32', sBase, t1, d=t1)
        v('v_subrev_u32', sLo, t0, d=t0)
        e(vcmp('v_cmp_gt_u32', sHi, t0))
        e(valu('v_cndmask_b32', vDMA[p], big, t1))
    sRB = sU[4]
    e(salu('s_mul_i32', sRB, sR0, ROWB))
    x0 = []
    for p in range(4):
        e(salu('s_add_u32', sT1, sRB, (-ROWB - 4096 + 1024 * p) & 0xffffffff))
        x0.append(v('v_add_u32', sT1, vDMA[p]))
    e(salu('s_add_u32', sU[5], sRB, 1 * ROWB - 4096)); e(salu('s_add_u32', sU[6], sRB, 3 * ROWB - 4096))
    e(salu('s_add_u32', sDma, sRB, 5 * ROWB - 4096)); e(salu('s_add_u32', sDma2, sRB, 7 * ROWB - 4096))
    r1 = v('v_lshlrev_b32', 2, b4)
    v('v_xor_b32', r1, c8, d=r1); v('v_lshlrev_b32', 4, r1, d=r1)
    l8 = v('v_lshrrev_b32', 3, lane)
    e(valu('v_mov_b32', t1, 768)); v('v_mad_u32_u24', l8, t1, r1, d=r1)
    h16 = v('v_lshlrev_b32', 4, b5)
    e(valu('v_mov_b32', t1, 192)); r2 = v('v_mad_u32_u24', l31, t1, h16)
    e(salu('s_mul_i32', sU[7], sW, 3072))
    e(salu('s_add_u32', sU[8], sWQ, 6144)); e(salu('s_add_u32', sU[9], sWQ, 12288))
    e(waitcnt(lgkm=0))
    e(mark('karg'))
    begin('pf')
    e(bload('buffer_load_dword', SPARE[2], l64, SRD['w1'], sPF)); e(bload('buffer_load_dword', SPARE[3], l64, SRD['w2'], sPF))
    begin('small')
    DW = [new() for _ in range(4)]
    for kr in range(3): e(bload('buffer_load_ushort', DW[kr], tid2, SRD['dw'], 0, 576 * kr))
    e(bload('buffer_load_ushort', DW[3], idxb, SRD['dw'], sU[3], 512))
    G = [new(), new(), new()]
    for t in range(3): e(bload('buffer_load_ushort', G[t], gch, SRD['g'], 0, 64 * t))
    g2, b2v, b1v = new(), new(), new()
    e(bload('buffer_load_ushort', g2, gch, SRD['g'], sU[1])); e(bload('buffer_load_ushort', b2v, gch, SRD['b2'], sU[1]))
    e(bload('buffer_load_dword', b1v, l4, SRD['b1'], sU[2]))
    for k in range(3):
        begin(f'x{k}')
        for p in range(4):
            if k == 0:
                e(salu('s_add_u32', M0, sWP, 1024 * p)); d = dma(x0[p], SRDX, 0)
            else:
                if p == 0: e(salu('s_add_u32', M0, sWP, k * RINGP + 32 * (k & 1)))
                d = dma(vDMA[p], SRDX, sU[4 + k], 1024 * p)
            d.tag = 'x0'; e(d)
    for jj in range(6):
        begin(f'w1{jj}')
        for k in range(3):
            e(salu('s_add_u32', sT1, sWQ, k * 6144 + jj * 128))
            e(salu('s_add_u32', M0, sU[7], RAW1 + jj * 12288 + k * 1024))
            d = dma(r1, SRD['w1'], sT1); d.tag = 'raw1'; e(d)
    R2 = [[ACC[4 * f:4 * f + 4] for f in range(6)], [ACC[24 + 4 * f:28 + 4 * f] for f in range(6)],
          [X[1][4 * f:4 * f + 4] for f in range(4)] + [YP[0:4], YP[4:8]]]
    for jl in range(3):
        begin(f'w2{jl}')
        for f in range(6): e(bload('buffer_load_dwordx4', R2[jl][f], r2, SRD['w2'], [sWQ, sU[8], sU[9]][jl], 32 * f))
    begin('P1')
    t0, t1, t2 = new(), new(), new()
    for r, val in ((sK[0], GK), (sK[1], GK), (sS[0], SC), (sS[1], SC), (sInv96, 1.0 / 96), (sEps, 1e-5)):
        e(salu('s_mov_b32', r, f2u(val)))
    rel = new()
    def ring_addr(dst, iota, extra):
        kk = v('v_lshrrev_b32', 1, iota, d=t0)
        e(valu('v_mov_b32', t1, RINGP)); v('v_mul_u32_u24', kk, t1, d=rel)
        v('v_and_b32', 1, kk, d=t0); v('v_lshl_add_u32', t0, 5, rel, d=rel)
        v('v_and_b32', 1, iota, d=t0); e(valu('v_mov_b32', t1, 121 * 16)); v('v_mad_u32_u24', t0, t1, rel, d=rel)
        e(valu('v_mov_b32', t1, 192)); v('v_mad_u32_u24', c8, t1, rel, d=rel)
        if extra is not None: v('v_add_u32', rel, extra, d=rel)
        v('v_add_u32', sWP, rel, d=dst)
    io = v('v_lshl_add_u32', b3, 1, q)
    ring_addr(vConv, io, None)
    prow = v('v_lshl_add_u32', b3, 1, b4)
    v('v_add_u32', 1, prow, d=io)
    ex = v('v_add_u32', 192, h16)
    ring_addr(vRes, io, ex)
    e(valu('v_mov_b32', t1, ROWB)); v('v_mad_u32_u24', prow, t1, h16, d=vSt)
    v('v_add_u32', sC0, c8, d=t0); e(valu('v_mov_b32', t1, 192)); v('v_mad_u32_u24', t0, t1, vSt, d=vSt)
    v('v_add_u32', B1T, h16, d=vB1)
    v('v_sub_u32', q, b2_, d=t0)
    v('v_lshl_add_u32', b3, 2, lo2, d=t1)
    v('v_lshl_add_u32', t0, 3, t1, d=t1)
    e(vcmp('v_cmp_gt_u32', 3, t0))
    v('v_mov_b32', 24, d=t2)
    e(valu('v_cndmask_b32', t1, t2, t1))
    v('v_lshlrev_b32', 4, t1, d=t1); v('v_add_u32', TAB, t1, d=vTab)
    v('v_add_u32', W1F, l16, d=vA); v('v_add_u32', 98304, l16, d=vB)
    dsel = v('v_lshlrev_b32', 2, b4); v('v_lshl_add_u32', b3, 1, dsel, d=dsel)
    v('v_bfe_u32', lane, 1, 1, d=t1); v('v_add_u32', dsel, t1, d=dsel)
    e(vcmp('v_cmp_eq_u32', b2_, b5))
    v('v_mov_b32', 8, d=t2); e(valu('v_cndmask_b32', dsel, t2, dsel))
    shl = v('v_and_b32', 1, lane); v('v_lshlrev_b32', 4, shl, d=shl)
    one = v('v_mov_b32', 0x3f80); v('v_lshlrev_b32', shl, one, d=one)
    MK = T[0:4]; ZR = T[4:8]
    v('v_mov_b32', 0xffff, d=t2); v('v_lshlrev_b32', shl, t2, d=t2)
    v('v_bfe_u32', lane, 1, 2, d=t0)
    for i in range(4):
        e(vcmp('v_cmp_eq_u32', i, t0)); e(valu('v_mov_b32', ZR[i], 0)); e(valu('v_cndmask_b32', MK[i], 0, t2))
    e(valu('v_mov_b32', t1, 400))
    v('v_min_u32', 35, lane, d=t0); v('v_mul_u32_u24', t0, t1, d=t0); v('v_add_u32', TAB + 384, t0, d=t0)
    e(dsw('ds_write_b128', t0, ZR))
    ta = v('v_lshrrev_b32', 3, tid); v('v_mul_u32_u24', ta, t1, d=ta); v('v_lshl_add_u32', c8, 4, ta, d=ta)
    v('v_add_u32', TAB, ta, d=ta)
    tb = v('v_lshrrev_b32', 3, l31); v('v_mul_u32_u24', tb, t1, d=tb); v('v_lshl_add_u32', c8, 4, tb, d=tb)
    e(salu('s_lshl_b32', sT0, sW3, 7)); e(salu('s_add_u32', sT0, sT0, TAB + 32 * 400))
    v('v_add_u32', sT0, tb, d=tb)
    e(salu('s_lshl_b32', sT0, sW3, 9)); e(salu('s_add_u32', sT0, sT0, B1T))
    tc = v('v_lshlrev_b32', 3, lane); v('v_add_u32', sT0, tc, d=tc)
    e(salu('s_lshl_b32', sT0, sW3, 7)); e(salu('s_add_u32', sT0, sT0, B2T))
    td = v('v_lshlrev_b32', 2, l31); v('v_add_u32', sT0, td, d=td)
    rr = v('v_bfe_u32', lane, 2, 2)
    hr = v('v_lshl_add_u32', b5, 2, rr)
    a1 = [V(248 + i) for i in range(4)]; an = [V(252), V(253)]
    v('v_lshlrev_b32', 7, hr, d=a1[0]); v('v_lshl_add_u32', b4, 5, a1[0], d=a1[0]); v('v_lshl_add_u32', lo2, 3, a1[0], d=a1[0])
    v('v_lshl_add_u32', b3, 6, a1[0], d=a1[0])
    v('v_xor_b32', 64, a1[0], d=a1[1])
    v('v_add_u32', RAW1, a1[0], d=a1[0]); v('v_add_u32', RAW1, a1[1], d=a1[1])
    v('v_add_u32', 36864, a1[0], d=a1[2]); v('v_add_u32', 36864, a1[1], d=a1[3])
    e(salu('s_mul_i32', sT0, sW, 12288))
    v('v_add_u32', sT0, a1[0], d=an[0]); v('v_add_u32', sT0, a1[1], d=an[1])
    begin('P2')
    for k in range(4):
        D = X[0][4 * k:4 * k + 4]
        v('v_lshl_or_b32', DW[k], 16, DW[k], d=DW[k])
        for i in range(4): e(valu('v_and_b32', D[i], MK[i], DW[k]))
        e(dsw('ds_write_b128', ta if k < 3 else tb, D, 128 * k if k < 3 else 0))
    for t in range(3): v('v_lshlrev_b32', shl, G[t], d=G[t])
    BG = [W2S[8 * t:8 * t + 8] for t in range(3)]
    for i in range(8):
        e(vcmp('v_cmp_eq_u32', i, dsel))
        if i == 0:
            PB = T[8:10]
            v('v_lshlrev_b32', 16, b1v, d=PB[0]); v('v_and_b32', 0xffff0000, b1v, d=PB[1])
        e(valu('v_cndmask_b32', IDF[i], 0, one))
        for t in range(3): e(valu('v_cndmask_b32', BG[t][i], 0, G[t]))
    e(pk('v_pk_mul_f32', PB, PB, sS))
    e(dsw('ds_write_b64', tc, PB))
    v('v_lshlrev_b32', 16, g2, d=g2); v('v_lshlrev_b32', 16, b2v, d=b2v); v('v_mul_f32', g2, b2v, d=g2)
    e(dsw('ds_write_b32', td, g2))
    e(salu('s_add_u32', sP0, sWP, 32)); e(salu('s_add_u32', sP1, sWP, RINGP))
    e(salu('s_mov_b32', sT2, sRB)); e(salu('s_mov_b32', sSt, 0x80000000))
    begin('conv')
    CB = [CS, Z]
    def crd(g, m):
        B = CB[g % 2]
        return [dsr('ds_read_b128', B[8 * m:8 * m + 4], vTab, (m * 12 + g) * 400), dsr('ds_read_b128', B[8 * m + 4:8 * m + 8], vConv, m * 192 + 16 * g)]
    e(wait_tag('x0'))
    e(mark('xarr'))
    for g in range(2):
        for m in range(3): cur.extend(crd(g, m))
    for g in range(12):
        B = CB[g % 2]; d = CV[4 * g:4 * g + 4]
        for m in range(3):
            e(mfma(d, B[8 * m:8 * m + 4], B[8 * m + 4:8 * m + 8], 0 if m == 0 else d, big=False))
            if m == 2 and g < 11: e(wait_for(CB[(g + 1) % 2][0:8]))
            if g < 10: cur.extend(crd(g + 2, m))
    e(mark('conv'))
    begin('ln')
    for g in range(12): cur.extend(ln_stats(g))
    cur.extend(ln_final()); cur.extend(ln_norm()); cur.extend(ln_cvt()); cur.extend(rotate(vConv))
    begin('tr')
    NRS = CS[0:8]
    assert NR == [(j, 5) for j in range(4, 12)]
    for jo in range(2):
        for u in range(2):
            e(dsr('ds_read_b64_tr_b16', NRS[4 * jo + 2 * u:4 * jo + 2 * u + 2], an[jo], 2 * 12288 + (80 + 8 * u) * 128))
    for (j, sg), r in RES.items():
        jj, jo = j // 2, j % 2
        for u in range(2):
            e(dsr('ds_read_b64_tr_b16', r[2 * u:2 * u + 2], a1[jo + 2 * (jj >= 3)], (jj % 3) * 12288 + (16 * sg + 8 * u) * 128))
    begin('fold')
    DD = [T, X[0]]
    prs = [(jl, t) for jl in range(3) for t in range(3)]
    def cvts(n):
        jl, t = prs[n]; D = DD[n % 2]
        return [valu('v_cvt_pk_bf16_f32', R2[jl][2 * t + i // 4][i % 4], D[2 * i], D[2 * i + 1]) for i in range(8)]
    for n, (jl, t) in enumerate(prs):
        D = DD[n % 2]
        c = cvts(n - 1) if n else []
        e(mfma(D, R2[jl][2 * t], BG[t][0:4], 0)); cur.extend(c[:4])
        e(mfma(D, R2[jl][2 * t + 1], BG[t][4:8], D)); cur.extend(c[4:])
    cur.extend(cvts(8))
    begin('w1f')
    e(salu('s_lshl_b32', sT0, sW, 11)); e(salu('s_add_u32', sT1, sWQ, W2F - W1F))
    wa = v('v_add_u32', sT0, vA, d=SPARE[2]); w2w = v('v_add_u32', sT1, vA, d=SPARE[3])
    for jo in range(2): e(dsw('ds_write_b128', wa, NRS[4 * jo:4 * jo + 4], 1024 * jo))
    cur.extend(b1_reads(0))
    begin('w2w')
    for jl in range(3):
        for k in range(2):
            for t in range(3): e(dsw('ds_write_b128', w2w, R2[jl][2 * t + k], jl * 6144 + (3 * k + t) * 1024))
    e(salu('s_add_u32', sT1, sWP, 2 * RINGP))
    S_ = seg
    xs = S_['x0'] + S_['x1'] + S_['x2']
    w1s = sum((S_[f'w1{j}'] for j in range(6)), [])
    w2s = sum((S_[f'w2{j}'] for j in range(3)), [])
    pf = [] if DBG.get('nopf') else S_['pf']
    o = list(S_['P0'])
    B1 = [wait_tag('raw1'), barrier(), mark('B1')]
    if not DBG.get('worder'):
        o += pf + S_['small'] + xs + S_['P1'] + w1s[:27] + S_['P2'] + w1s[27:] + w2s + [mark('issued'), barrier()]
        o += S_['conv'] + B1
        o += merge(S_['ln'] + S_['fold'], S_['tr'], 6, 4) + S_['w1f'] + [barrier(), mark('B2')] + S_['w2w'] + [barrier()]
    else:
        o += pf + S_['small'] + S_['x0'] + w1s + S_['P1'] + w2s + S_['x1'] + S_['x2'] + S_['P2'] + [mark('issued')] + B1
        o += merge(S_['fold'], S_['tr'], 3, 4) + S_['w1f'] + [barrier(), mark('B2')] + S_['w2w']
        o += S_['conv'] + S_['ln'] + [barrier()]
    o.append(mark('end'))
    return o

def build(peel=False):
    o = prologue()
    if peel:
        o += body(first=True)
        o.append(salu('s_mov_b32', sCnt, 6))
    else:
        o.append(salu('s_mov_b32', sCnt, 8))
    o.append(raw("  .p2align 6"))
    o.append(label('L_loop'))
    b = body()
    o += b
    o += [salu('s_sub_u32', sCnt, sCnt, 1), scmp('s_cmp_lg_u32', sCnt, 0), branch('s_cbranch_scc1', 'L_loop')]
    if peel: o += body(last=True)
    o += tail()
    o.append(label('L_end'))
    o.append(endpgm())
    o = passes.insert_waits(o)
    o = passes.fix_hazards(o)
    return o

HEAD = """; Kernarg layout (80 bytes, ptrs only, base s[0:1]): x, dw, w1, b1, w2, b2, gamma, out, debug, ws
; @launch grid=(256,1,1) block=(256,1,1) lds=163840
.amdgcn_target "amdgcn-amd-amdhsa--gfx950"
.text
.globl {n}_kernel
.p2align 8
.type {n}_kernel,@function
{n}_kernel:
"""
FOOT = """.section .rodata,"a"
.p2align 6
.amdhsa_kernel {n}_kernel
  .amdhsa_next_free_vgpr 512
  .amdhsa_next_free_sgpr 102
  .amdhsa_accum_offset 256
  .amdhsa_group_segment_fixed_size 0
  .amdhsa_kernarg_size 80
  .amdhsa_user_sgpr_count 2
  .amdhsa_user_sgpr_kernarg_segment_ptr 1
  .amdhsa_system_sgpr_workgroup_id_x 1
.end_amdhsa_kernel
"""
def emit(ins):
    return HEAD.format(n=NAME) + "\n".join(str(i) for i in ins) + "\n" + FOOT.format(n=NAME)

if __name__ == '__main__':
    peel = '--peel' in sys.argv
    ins = build(peel)
    out = [a for a in sys.argv[1:] if not a.startswith('--')]
    path = out[0] if out else f"/code/{NAME}.s"
    if '--prof' in sys.argv:
        import prof, json
        marks = ('M1', 'M2') if not DBG.get('coarse') else (' 0 M1',)
        if DBG.get('fine'): marks = tuple(f" {s_} {p_}" for s_ in (0, 1, 2, 3, 6, 11) for p_ in ('M1', 'Pa', 'M2', 'Pb')) + (' 4 M1', ' 7 M1')
        a = next(n for n, i in enumerate(ins) if i.cls == 'label' and i.src[0] == 'L_loop')
        b = next(n for n, i in enumerate(ins) if i.cls == 'branch' and i.src[0] == 'L_loop')
        tr = []; passes.cost_sim(ins[a:b + 1], tr)
        tt = [t for t, i in tr if i.cls == 'raw' and i.text.startswith('  ; ---- step') and i.text.endswith(marks)] + [tr[-3][0]]
        pi, np_, nl = prof.instrument(ins, marks)
        if not DBG.get('noalign'): pi = passes.align8(pi, verbose=True)
        open(path, 'w').write(emit(pi))
        json.dump({'pro': np_, 'loop': nl, 'iters': 6 if peel else 8, 'est': [y - x for x, y in zip(tt, tt[1:])]}, open(path[:-2] + '.json', 'w'))
    else:
        if not DBG.get('noalign'): ins = passes.align8(ins, verbose=True)
        open(path, 'w').write(emit(ins))
    a = next(n for n, i in enumerate(ins) if i.cls == 'label' and i.src[0] == 'L_loop')
    b = next(n for n, i in enumerate(ins) if i.cls == 'branch' and i.src[0] == 'L_loop')
    print("insts", len(ins), "prologue cost", passes.cost_sim(ins[:a]), "loop cost", passes.cost_sim(ins[a:b + 1]), "tail", passes.cost_sim(ins[b + 1:]))
    print("auto waits in loop:", sum(1 for i in ins[a:b] if i.note == 'auto'), "hazard nops in loop:", sum(1 for i in ins[a:b] if i.note and 'hazard' in i.note))
```

```python
from isa import *
LOOP_S = [36 + 2 * k for k in range(8)] + [60 + 2 * k for k in range(19)]
FIRST_S = [36 + 2 * k for k in range(8)] + [60, 62, 68, 70, 76, 78, 80, 82]
def instrument(ins, loop_marks, first_marks=()):
    out = []
    pro = 0
    inloop = False
    names_pro = []; names_loop = []
    started = False; names_first = []; seenloop = False
    for i in ins:
        t = i.text
        if i.cls == 'smem' and not started:
            started = True
            out.append(raw("  s_load_dwordx2 s[16:17], s[0:1], 72"))
            out.append(raw("  s_memtime s[84:85]")); out.append(raw("  s_memrealtime s[86:87]"))
            names_pro += ['start', 'rt0']; pro = 2
        if i.cls == 'raw' and t.startswith('  ; P:'):
            if t[6:] in names_pro:
                k = names_pro.index(t[6:]); out.append(raw(f"  s_memtime s[{84+2*k}:{85+2*k}]"))
            else:
                assert pro < 9
                out.append(raw(f"  s_memtime s[{84+2*pro}:{85+2*pro}]")); names_pro.append(t[6:]); pro += 1
        if not seenloop and i.cls == 'raw' and t.startswith('  ; ---- step') and any(t.endswith(m) for m in first_marks):
            r = FIRST_S[len(names_first)]
            out.append(raw(f"  s_memtime s[{r}:{r+1}]")); names_first.append(t[9:])
        if i.cls == 'raw' and t.startswith('  .p2align 6') and not inloop:
            seenloop = True
            out.append(raw("  s_waitcnt lgkmcnt(0)"))
            out.append(raw("  v_mov_b32 v252, 0"))
            for k in range(len(names_first)): out.append(raw(f"  v_writelane_b32 v252, s{FIRST_S[k]}, {16 + k}"))
            out.append(raw("  s_memrealtime s[36:37]"))
            out.append(raw("  s_waitcnt lgkmcnt(0)"))
            out.append(raw("  v_writelane_b32 v252, s36, 15"))
            for k in range(pro): out.append(raw(f"  v_writelane_b32 v252, s{84+2*k}, {k}"))
            out.append(raw("  s_mov_b32 s18, 0x10000000")); out.append(raw("  s_mov_b32 s19, 0x00020000"))
            out.append(raw("  v_mbcnt_lo_u32_b32 v254, -1, 0")); out.append(raw("  v_mbcnt_hi_u32_b32 v254, -1, v254"))
            out.append(raw("  v_lshlrev_b32 v254, 2, v254"))
            out.append(raw("  s_lshl_b32 s100, s2, 2")); out.append(raw("  s_add_u32 s100, s100, s27")); out.append(raw("  s_lshl_b32 s100, s100, 12"))
            out.append(raw("  s_add_u32 s101, s100, 256"))
            out.append(raw("  v_mov_b32 v253, 0"))
        if i.cls == 'label' and i.src[0] == 'L_loop': inloop = True
        if inloop and i.cls == 'raw' and any(t.endswith(m) for m in loop_marks) and t.startswith('  ; ---- step'):
            k = len(names_loop); r = LOOP_S[k]
            out.append(raw(f"  s_memtime s[{r}:{r+1}]")); names_loop.append(t[9:])
        if inloop and i.op == 's_sub_u32' and str(i.dst[0]) == 's26':
            k = len(names_loop); r = LOOP_S[k]
            out.append(raw(f"  s_memtime s[{r}:{r+1}]")); names_loop.append('end')
            out.append(raw("  s_memrealtime s[98:99]"))
            out.append(raw("  s_waitcnt lgkmcnt(0)"))
            for k in range(len(names_loop)): out.append(raw(f"  v_writelane_b32 v253, s{LOOP_S[k]}, {k}"))
            out.append(raw("  v_writelane_b32 v253, s98, 63"))
            out.append(raw("  buffer_store_dword v253, v254, s[16:19], s101 offen"))
            out.append(raw("  s_add_u32 s101, s101, 256"))
            out.append(raw("  s_nop 1"))
            inloop = False
        if i.cls == 'label' and i.src[0] == 'L_end':
            out.append(raw("  s_memtime s[84:85]")); out.append(raw("  s_waitcnt vmcnt(0)")); out.append(raw("  s_memtime s[88:89]")); out.append(raw("  s_memrealtime s[86:87]"))
            out.append(raw("  s_waitcnt lgkmcnt(0)"))
            out.append(raw("  v_writelane_b32 v252, s84, 10")); out.append(raw("  v_writelane_b32 v252, s88, 11")); out.append(raw("  v_writelane_b32 v252, s86, 12"))
            out.append(raw("  s_getreg_b32 s84, hwreg(HW_REG_XCC_ID)"))
            out.append(raw("  s_getreg_b32 s85, hwreg(HW_REG_HW_ID)"))
            out.append(raw("  v_writelane_b32 v252, s84, 13")); out.append(raw("  v_writelane_b32 v252, s85, 14"))
            out.append(raw("  buffer_store_dword v252, v254, s[16:19], s100 offen"))
        out.append(i)
    instrument.first = names_first
    return out, names_pro, names_loop
```

```python
import math, sys
from isa import *
import passes

DBG = {a[2:]: True for a in sys.argv if a.startswith('--')}
NAME = "standalone__modern_conv_block_convnext__vision"

LOG2E = 1.4426950408889634
GA = 2.0 * math.sqrt(2.0 / math.pi) * LOG2E
GB = GA * 0.044715
SC = GB ** (1.0 / 3.0)
GK = GA / SC
ROWB = 98304
XBYTES = 512 * ROWB

RING = 0; PAIRP = 4160; RINGP = 4 * PAIRP
W1F = 49920
RAW1 = 0
TAB = 73728
B1T = 88128
B2T = 89664
W2F = 90112
LDS_SIZE = 163840

vA, vB, vB1, vTab, vConv, vRes = V(0), V(1), V(2), V(3), V(4), V(5)
vDMA = V(6, 4); vSt = V(10); vTmp = V(11)
S2 = V(12, 2); Q2 = V(14, 2)
X = [V(16, 16), V(32, 16)]
T = V(48, 16)
ACC = V(64, 48)
CV = V(112, 48)
Z = V(160, 24)
YP = V(184, 8)
W2S = V(192, 24)
CS = V(216, 24)
IDF = V(240, 8)
W1S = V(248, 4)
SPARE = V(252, 4)

SRDX, SRDO, SRDT, SRDU = S(4, 4), S(8, 4), S(12, 4), S(16, 4)
sK, sS = S(20, 2), S(22, 2)
sInv96, sEps, sCnt, sW, sSt, sDma, sP0, sP1 = (S(i) for i in range(24, 32))
sT0, sT1, sT2, sT3 = (S(i) for i in range(32, 36))
KA = S(36, 16)
sDma2, sC0, sR0, sT4, sT5 = (S(i) for i in range(52, 57))

NR = [(j, 5) for j in range(4, 12)]
RES = {}
for j in range(12):
    for sg in range(6):
        if (j, sg) not in NR: RES[(j, sg)] = A(4 * len(RES), 4)
assert len(RES) <= 64

def w2addr(f):
    if f < 8: return vA, W2F - W1F + 1024 * f
    return vB, 1024 * (f - 8)

COST = {'valu': 4, 'trans': 8, 'perm': 8, 'dsr': 4, 'salu': 4, 'pseudo': 0, 'vst': 4, 'dma': 4, 'vld': 4, 'wait': 0, 'nop': 4}

def sched_M(mf, post, fill, pre=()):
    n = len(mf)
    gaps = {g: [] for g in range(-1, n)}
    cost = {g: 0 for g in range(-1, n)}
    for g in range(n):
        k = 0
        for i in post.get(g, []):
            c = COST[i.cls]
            if i.cls in ('salu', 'pseudo') and k == 0: c = 0
            cost[g] += c; k += 1
    need = {-1: 0}
    for g in range(n):
        L = 32 if mf[g].cls == 'M' else 16
        need[g] = L - 8 + (12 if g == n - 1 else 0)
    rest = []
    for (i, e, l) in fill:
        if l < n:
            gaps[e].append(i); cost[e] += COST[i.cls]
        else: rest.append((i, e))
    g = 0
    k = 0
    while k < len(rest):
        remc = sum(COST[i.cls] for i, _ in rest[k:])
        remneed = sum(max(0, need[x] - cost[x]) for x in range(g, n))
        extra = max(0, remc - remneed) / (n - g)
        i, e = rest[k]
        if e > g: g = e; continue
        c = COST[i.cls]
        if g == n - 1 or cost[g] < need[g] or cost[g] + c <= need[g] + extra + 0.01:
            gaps[g].append(i); cost[g] += c; k += 1
        else: g += 1
    out = list(pre) + gaps[-1]
    for g in range(n):
        out.append(mf[g]); out += post.get(g, []); out += gaps[g]
    return out

def interleave(a, b):
    if not b: return list(a)
    out = []; k = 0
    for n, x in enumerate(a):
        out.append(x)
        while k < len(b) and (k + 1) * len(a) <= (n + 1) * len(b) + 0:
            out.append(b[k]); k += 1
    out += b[k:]
    return out

def conv_reads(g, m):
    a = dsr('ds_read_b128', CS[8 * m:8 * m + 4], vTab, (m * 12 + g) * 400)
    b = dsr('ds_read_b128', CS[8 * m + 4:8 * m + 8], vConv, m * 192 + 16 * g)
    return [a, b]
def conv_mfma(g, m):
    d = CV[4 * g:4 * g + 4]
    return mfma(d, CS[8 * m:8 * m + 4], CS[8 * m + 4:8 * m + 8], 0 if m == 0 else d, big=False)
ORDER = list(range(6, 12)) + list(range(6)) if DBG.get('spread') else list(range(12))
def ln_stats(g, g0=0):
    p0, p1 = CV[4 * g:4 * g + 2], CV[4 * g + 2:4 * g + 4]
    if g == g0:
        return [pk('v_pk_add_f32', S2, p0, p1), pk('v_pk_mul_f32', Q2, p0, p0), pk('v_pk_fma_f32', Q2, p1, p1, Q2)]
    return [pk('v_pk_add_f32', S2, S2, p0), pk('v_pk_fma_f32', Q2, p0, p0, Q2),
            pk('v_pk_add_f32', S2, S2, p1), pk('v_pk_fma_f32', Q2, p1, p1, Q2)]
def ln_final():
    a, b, c, d = S2[0], S2[1], Q2[0], Q2[1]
    f = valu('v_fma_f32', b, a, a, b); f.mods['neg'] = [1, 0, 0]; f.text = f"  v_fma_f32 {b}, -{a}, {a}, {b}"
    o = [valu('v_add_f32', a, a, b), valu('v_add_f32', c, c, d), permswap(a, c), valu('v_add_f32', a, a, c),
         valu('v_mov_b32', c, a), permswap(a, c),
         valu('v_mul_f32', a, sInv96, a), valu('v_mul_f32', b, sInv96, c), f,
         valu('v_max_f32', b, 0, b), valu('v_add_f32', b, sEps, b), valu('v_rsq_f32', b, b),
         valu('v_sub_f32', a, 0, a),
         valu('v_mul_f32', c, sS[0], b), valu('v_mul_f32', a, a, c)]
    return o
def ln_norm():
    return [pk('v_pk_fma_f32', CV[2 * i:2 * i + 2], CV[2 * i:2 * i + 2], Q2, S2, bcast=[0, 1, 1]) for i in range(24)]
def ln_cvt():
    return [valu('v_cvt_pk_bf16_f32', Z[i], CV[2 * i], CV[2 * i + 1]) for i in range(24)]
def b1_reads(s):
    return [dsr('ds_read_b128', X[s % 2][4 * a:4 * a + 4], vB1, 4 * (32 * s + 8 * a)) for a in range(4)]
def rotate(r):
    return [valu('v_subrev_u32', vTmp, RINGP, r), valu('v_add_u32', r, 2 * RINGP, r), valu('v_min_u32', r, vTmp, r)]
def w2_reads(j):
    o = []
    for f in range(6):
        b, off = w2addr(6 * j + f)
        o.append(dsr('ds_read_b128', W2S[4 * f:4 * f + 4], b, off))
    return o
def g2_mfmas():
    return [mfma(ACC[16 * t:16 * t + 16], W2S[4 * (3 * k + t):4 * (3 * k + t) + 4], YP[4 * k:4 * k + 4], ACC[16 * t:16 * t + 16])
            for k in range(2) for t in range(3)]
def epi_cvt():
    return [valu('v_cvt_pk_bf16_f32', CV[i], ACC[2 * i], ACC[2 * i + 1]) for i in range(24)]
def epi_stores():
    ex = ' sc1' if DBG.get('sc1') else ' nt' if DBG.get('nt') else ' sc0 sc1' if DBG.get('sc01') else ' sc1 nt' if DBG.get('sc1nt') else ''
    return [bstore('buffer_store_dwordx4', CV[4 * k:4 * k + 4], vSt, SRDO, sSt, 32 * k, extra=ex) for k in range(6)]


class Phase:
    def __init__(p, ms, cg):
        p.mf = []
        for k, m_ in enumerate(ms):
            p.mf.append(m_)
            if cg is not None and k < 3: p.mf.append(conv_mfma(ORDER[cg], k))
        p.M = [k for k, m_ in enumerate(p.mf) if m_.cls == 'M']
        p.S = [k for k, m_ in enumerate(p.mf) if m_.cls == 'S']
        p.post = {}; p.fl = []; p.dl = []
    def after(p, g, *l): p.post.setdefault(g, []).extend(l)
    def first(p, g, *l): p.post[g] = list(l) + p.post.get(g, [])
    def build(p):
        return sched_M(p.mf, p.post, p.dl + [(i, 0, 99) for i in p.fl])

C0 = 5
STP = [(2, 2), (3, 2), (5, 1), (6, 2), (7, 2), (9, 1)] if DBG.get('spread') else [(2, 1), (2, 2), (3, 1), (3, 2), (4, 1), (4, 2)]
def body(first=False, last=False):
    o = []
    st = epi_stores()
    for s in range(12):
        xs, xp = X[s % 2], X[(s - 1) % 2]
        prev = not (first and s == 0)
        o.append(raw(f"  ; ---- step {s} M1"))
        cg = 2 * (s - C0) if (C0 <= s < C0 + 6 and not last) else None
        p = Phase([mfma(xs, RES.get((s, sg), W1S), Z[4 * sg:4 * sg + 4], xs) for sg in range(6)], cg)
        if (s, 5) in NR:
            p.after(p.M[0], dsr('ds_read_b128', W1S, vA, 1024 * NR.index((s, 5))))
            p.first(p.M[4], wait_for(W1S))
        if prev:
            wr = w2_reads((s - 1) % 12)
            for k in range(6): p.after(p.M[k // 2], wr[k])
            p.fl = [valu('v_rcp_f32', T[i], T[i]) for i in range(16)]
        if cg is not None:
            for m in range(3): p.after(p.S[m], *conv_reads(ORDER[cg + 1], m))
        if s == 0:
            for k in range(6): p.after(p.M[3 + k // 3], dsr('ds_read_b128', CV[24 + 4 * k:28 + 4 * k], vRes, 32 * k))
        if s == 1 and not first: p.fl = interleave(p.fl, epi_cvt())
        if s == 11 and not last: p.fl = interleave(p.fl, ln_final())
        if (s, 1) in STP and not first: p.after(p.M[3], st[STP.index((s, 1))])
        p.first(p.M[5], wait_for(W2S, CS))
        o += p.build()
        if s == 1:
            o += [dsr('ds_read_b128', ACC[4 * k:4 * k + 4], vB1, B2T - B1T + 32 * k) for k in range(12)]
        o.append(raw(f"  ; ---- step {s} Pa"))
        pa = []
        if prev: pa += [pk('v_pk_mul_f32', xp[2 * i:2 * i + 2], xp[2 * i:2 * i + 2], T[2 * i:2 * i + 2]) for i in range(8)]
        if cg is not None: pa += ln_stats(ORDER[cg], ORDER[0])
        if s == 11 and not last: pa += ln_norm()
        pa += [pk('v_pk_fma_f32', T[2 * i:2 * i + 2], xs[2 * i:2 * i + 2], xs[2 * i:2 * i + 2], sK, neg=[1, 0, 1]) for i in range(8)]
        pa += [pk('v_pk_mul_f32', T[2 * i:2 * i + 2], xs[2 * i:2 * i + 2], T[2 * i:2 * i + 2]) for i in range(8)]
        cv = [valu('v_cvt_pk_bf16_f32', YP[i], xp[2 * i], xp[2 * i + 1]) for i in range(8)] if prev else []
        pa = pa[:-3] + cv[:4] + pa[-3:]
        o += pa
        o.append(raw(f"  ; ---- step {s} M2"))
        g2 = g2_mfmas() if prev else []
        if s == 1:
            g2 = g2 + [mfma(ACC[16 * t:16 * t + 16], IDF[4 * k:4 * k + 4], CV[24 + 4 * (2 * t + k):28 + 4 * (2 * t + k)],
                            ACC[16 * t:16 * t + 16]) for k in range(2) for t in range(3)]
        cg = 2 * (s - C0) + 1 if (C0 <= s < C0 + 6 and not last) else None
        ex = [valu('v_exp_f32', T[i], T[i]) for i in range(16)]
        br = b1_reads((s + 1) % 12) if not (last and s == 11) else []
        dm = []
        if s in (0, 1) and not last:
            dm = [salu('s_mov_b32', M0, sP0 if s == 0 else sP1)]
            for k in range(4):
                d = dma(vDMA[k], SRDX, sDma if s == 0 else sDma2, 1024 * k); d.tag = 'xdma'; dm.append(d)
        if not g2:
            o += [wait_for(CV)] + br + dm[:1] + ex[:1] + dm[1:] + ex[1:]
        else:
            p = Phase(g2, cg)
            p.dl = [(c, 0, p.M[2]) for c in cv[4:]]
            for k, b in enumerate(br): p.after(p.M[1 + k // 2], b)
            if cg is not None and cg < 11:
                for m in range(3): p.after(p.S[m], *conv_reads(ORDER[cg + 1], m))
            if s == C0 - 1 and not last:
                p.first(p.M[0], wait_tag('xdma'))
                for m in range(3): p.after(p.M[m], *conv_reads(ORDER[0], m))
            if dm:
                p.first(p.M[0], dm[0])
                if s == 0: p.first(p.M[1], wait_for(CV))
                for k in range(4): p.after(p.M[1 + k], dm[1 + k])
            if s == 11 and not last: ex = interleave(ex, ln_cvt()) + rotate(vConv)
            if s == 2 and not last: ex = interleave(ex, rotate(vRes))
            if (s, 2) in STP and not first: p.after(p.M[3], st[STP.index((s, 2))])
            if s == 7 and DBG.get('xpf') and not last: p.after(p.M[4], bload('buffer_load_dword', vTmp, SPARE[3], SRDX, sDma))
            if s == 6 and not last:
                ups = [salu('s_add_u32', sDma, sDma, 4 * ROWB), salu('s_add_u32', sDma2, sDma2, 4 * ROWB),
                       salu('s_mov_b32', sT0, sP0), salu('s_add_u32', sP0, sT1, 32), salu('s_sub_u32', sT1, sP1, 0),
                       salu('s_sub_u32', sP1, sT0, 32)]
                for k, u in enumerate(ups): p.first(p.M[k], u)
            if s == 10:
                p.first(p.M[0], salu('s_mov_b32', sSt, sT2))
                p.first(p.M[1], salu('s_add_u32', sT2, sT2, 4 * ROWB))
            p.fl = ex
            p.first(p.M[-1], wait_for(X[0], X[1], CS))
            o += p.build()
        o.append(raw(f"  ; ---- step {s} Pb"))
        pb = [pk('v_pk_fma_f32', T[2 * i:2 * i + 2], T[2 * i:2 * i + 2], sS, sS) for i in range(8)]
        if cg is not None: pb = ln_stats(ORDER[cg], ORDER[0]) + pb
        o += pb
    return o

def tail():
    o = [raw("  ; ---- tail")]
    xp = X[1]
    o += w2_reads(11)
    o += [valu('v_rcp_f32', T[i], T[i]) for i in range(16)]
    o += [pk('v_pk_mul_f32', xp[2 * i:2 * i + 2], xp[2 * i:2 * i + 2], T[2 * i:2 * i + 2]) for i in range(8)]
    o += [valu('v_cvt_pk_bf16_f32', YP[i], xp[2 * i], xp[2 * i + 1]) for i in range(8)]
    g = g2_mfmas()
    o += [g[0], g[3], g[1], g[4], g[2], g[5]]
    ec = epi_cvt(); st = epi_stores()
    for k in range(6):
        o += ec[4 * k:4 * k + 4] + [st[k]]
    return o

SRD = {'x': SRDX, 'dw': S(60, 4), 'w1': S(64, 4), 'b1': S(68, 4), 'w2': S(72, 4), 'b2': S(76, 4), 'g': S(80, 4), 'out': SRDO}
SIZES = {'x': XBYTES, 'dw': 1728, 'w1': 73728, 'b1': 768, 'w2': 73728, 'b2': 192, 'g': 192, 'out': XBYTES}

def wg_origin(wg):
    if DBG.get('noremap'): return 32 * (wg >> 4), 32 * (wg & 15)
    x, i = wg & 7, wg >> 3
    return 32 * ((x >> 1) * 4 + (i >> 3)), 32 * ((x & 1) * 8 + (i & 7))

def merge(work, extra, nw, ne):
    out = []; k = 0
    for n, x in enumerate(work):
        out.append(x)
        if (n + 1) % nw == 0:
            out += extra[k:k + ne]; k += ne
    return out + extra[k:]

def prologue():
    seg = {}
    cur = []
    def e(x): cur.append(x)
    def begin(name):
        nonlocal cur
        cur = seg.setdefault(name, [])
    tmp = [V(i) for i in range(112, 184)]
    def new(): return tmp.pop(0)
    def v(op, *src, d=None):
        d = d or new(); e(valu(op, d, *src)); return d
    mark = lambda n: raw(f"  ; P:{n}")
    RAW1 = W2F
    begin('P0')
    e(scmp('s_cmp_ge_u32', S(2), 256)); e(branch('s_cbranch_scc1', 'L_end'))
    for n, k in sorted(enumerate(['x', 'dw', 'w1', 'b1', 'w2', 'b2', 'g', 'out']), key=lambda t: ['w1', 'w2', 'dw', 'g', 'b2', 'b1', 'x', 'out'].index(t[1])):
        e(sload(SRD[k][0:2], S(0, 2), 8 * n))
    tid = v('v_mov_b32', V(0))
    lane = v('v_and_b32', 63, V(0))
    wv = v('v_lshrrev_b32', 6, V(0))
    l16 = v('v_lshlrev_b32', 4, lane)
    e(rfl(sW, wv))
    for k in SRD:
        e(salu('s_mov_b32', SRD[k][2], SIZES[k])); e(salu('s_mov_b32', SRD[k][3], 0x00020000))
    if DBG.get('noremap'):
        e(salu('s_lshr_b32', sR0, S(2), 4)); e(salu('s_lshl_b32', sR0, sR0, 5))
        e(salu('s_and_b32', sC0, S(2), 15)); e(salu('s_lshl_b32', sC0, sC0, 5))
    else:
        e(salu('s_and_b32', sR0, S(2), 6)); e(salu('s_lshl_b32', sR0, sR0, 1)); e(salu('s_lshr_b32', sT0, S(2), 6))
        e(salu('s_add_u32', sR0, sR0, sT0)); e(salu('s_lshl_b32', sR0, sR0, 5))
        e(salu('s_and_b32', sC0, S(2), 1)); e(salu('s_lshl_b32', sC0, sC0, 8)); e(salu('s_and_b32', sT0, S(2), 56))
        e(salu('s_lshl_b32', sT0, sT0, 2)); e(salu('s_add_u32', sC0, sC0, sT0))
    e(salu('s_lshl_b32', sT0, sW, 3)); e(salu('s_add_u32', sC0, sC0, sT0))
    sW3 = S(57); sWP = S(58); sWQ = S(59)
    sU = [S(36 + i) for i in range(16)]
    e(salu('s_min_u32', sW3, sW, 2))
    e(salu('s_mul_i32', sWP, sW, PAIRP))
    e(salu('s_mul_i32', sWQ, sW, 18432))
    sPF = sU[0]
    e(salu('s_lshl_b32', sT0, S(2), 2)); e(salu('s_add_u32', sT0, sT0, sW))
    e(salu('s_mul_i32', sT1, sT0, 3641)); e(salu('s_lshr_b32', sT1, sT1, 16)); e(salu('s_mul_i32', sT1, sT1, 18))
    e(salu('s_sub_u32', sPF, sT0, sT1)); e(salu('s_lshl_b32', sPF, sPF, 12))
    l64 = v('v_lshlrev_b32', 6, lane)
    c8 = v('v_and_b32', 7, lane)
    b3 = v('v_bfe_u32', lane, 3, 1)
    b4 = v('v_bfe_u32', lane, 4, 1)
    b5 = v('v_lshrrev_b32', 5, lane)
    b2_ = v('v_bfe_u32', lane, 2, 1)
    lo2 = v('v_and_b32', 3, lane)
    q = v('v_lshrrev_b32', 4, lane)
    gch = v('v_lshlrev_b32', 4, b4)
    v('v_lshl_add_u32', b2_, 3, gch, d=gch); v('v_lshl_add_u32', b3, 2, gch, d=gch); v('v_add_u32', gch, lo2, d=gch)
    v('v_lshlrev_b32', 1, gch, d=gch)
    l4 = v('v_lshlrev_b32', 2, lane)
    tid2 = v('v_lshlrev_b32', 1, tid)
    l31 = v('v_and_b32', 31, lane)
    idxb = v('v_lshlrev_b32', 1, l31)
    e(salu('s_lshl_b32', sU[1], sW3, 6)); e(salu('s_lshl_b32', sU[2], sW3, 8)); e(salu('s_mul_i32', sU[3], sW3, 576))
    sLo, sHi, sBase = sT3, sT4, sT5
    e(scmp('s_cmp_eq_u32', sC0, 0)); e(salu('s_cselect_b32', sLo, 12, 0))
    e(scmp('s_cmp_eq_u32', sC0, 504)); e(salu('s_cselect_b32', sHi, 12, 0))
    e(salu('s_add_u32', sHi, sHi, sLo)); e(salu('s_sub_u32', sHi, 120, sHi))
    e(salu('s_mul_i32', sBase, sC0, 192)); e(salu('s_add_u32', sBase, sBase, 4096 - 192))
    big = v('v_mov_b32', 0x80000000)
    t0, t1, t2 = new(), new(), new()
    for p in range(4):
        if p == 0:
            v('v_mov_b32', lane, d=t0); v('v_mov_b32', 0, d=t1)
        elif p == 1:
            v('v_add_u32', 64, lane, d=t0)
            v('v_subrev_u32', 57, lane, d=t2)
            e(vcmp('v_cmp_le_u32', 57, lane))
            v('v_mov_b32', ROWB - 1024, d=t1)
            e(valu('v_cndmask_b32', t0, t0, t2))
            v('v_mov_b32', -1024, d=t2)
            e(valu('v_cndmask_b32', t1, t2, t1))
        else:
            v('v_add_u32', 64 * p - 121, lane, d=t0); v('v_mov_b32', ROWB - 1024 * p, d=t1)
        v('v_lshl_add_u32', t0, 4, t1, d=t1)
        v('v_add_u32', sBase, t1, d=t1)
        v('v_subrev_u32', sLo, t0, d=t0)
        e(vcmp('v_cmp_gt_u32', sHi, t0))
        e(valu('v_cndmask_b32', vDMA[p], big, t1))
    sRB = sU[4]
    e(salu('s_mul_i32', sRB, sR0, ROWB))
    x0 = []
    for p in range(4):
        e(salu('s_add_u32', sT1, sRB, (-ROWB - 4096 + 1024 * p) & 0xffffffff))
        x0.append(v('v_add_u32', sT1, vDMA[p]))
    e(salu('s_add_u32', sU[5], sRB, 1 * ROWB - 4096)); e(salu('s_add_u32', sU[6], sRB, 3 * ROWB - 4096))
    e(salu('s_add_u32', sDma, sRB, 5 * ROWB - 4096)); e(salu('s_add_u32', sDma2, sRB, 7 * ROWB - 4096))
    r1 = v('v_lshlrev_b32', 2, b4)
    v('v_xor_b32', r1, c8, d=r1); v('v_lshlrev_b32', 4, r1, d=r1)
    l8 = v('v_lshrrev_b32', 3, lane)
    e(valu('v_mov_b32', t1, 768)); v('v_mad_u32_u24', l8, t1, r1, d=r1)
    h16 = v('v_lshlrev_b32', 4, b5)
    e(valu('v_mov_b32', t1, 192)); r2 = v('v_mad_u32_u24', l31, t1, h16)
    e(salu('s_mul_i32', sU[7], sW, 3072))
    e(salu('s_add_u32', sU[8], sWQ, 6144)); e(salu('s_add_u32', sU[9], sWQ, 12288))
    e(waitcnt(lgkm=0))
    e(mark('karg'))
    begin('pf')
    e(bload('buffer_load_dword', SPARE[2], l64, SRD['w1'], sPF)); e(bload('buffer_load_dword', SPARE[3], l64, SRD['w2'], sPF))
    begin('small')
    DW = [new() for _ in range(4)]
    for kr in range(3): e(bload('buffer_load_ushort', DW[kr], tid2, SRD['dw'], 0, 576 * kr))
    e(bload('buffer_load_ushort', DW[3], idxb, SRD['dw'], sU[3], 512))
    G = [new(), new(), new()]
    for t in range(3): e(bload('buffer_load_ushort', G[t], gch, SRD['g'], 0, 64 * t))
    g2, b2v, b1v = new(), new(), new()
    e(bload('buffer_load_ushort', g2, gch, SRD['g'], sU[1])); e(bload('buffer_load_ushort', b2v, gch, SRD['b2'], sU[1]))
    e(bload('buffer_load_dword', b1v, l4, SRD['b1'], sU[2]))
    for k in range(3):
        begin(f'x{k}')
        for p in range(4):
            if k == 0:
                e(salu('s_add_u32', M0, sWP, 1024 * p)); d = dma(x0[p], SRDX, 0)
            else:
                if p == 0: e(salu('s_add_u32', M0, sWP, k * RINGP + 32 * (k & 1)))
                d = dma(vDMA[p], SRDX, sU[4 + k], 1024 * p)
            d.tag = 'x0'; e(d)
    for jj in range(6):
        begin(f'w1{jj}')
        for k in range(3):
            e(salu('s_add_u32', sT1, sWQ, k * 6144 + jj * 128))
            e(salu('s_add_u32', M0, sU[7], RAW1 + jj * 12288 + k * 1024))
            d = dma(r1, SRD['w1'], sT1); d.tag = 'raw1'; e(d)
    R2 = [[ACC[4 * f:4 * f + 4] for f in range(6)], [ACC[24 + 4 * f:28 + 4 * f] for f in range(6)],
          [X[1][4 * f:4 * f + 4] for f in range(4)] + [YP[0:4], YP[4:8]]]
    for jl in range(3):
        begin(f'w2{jl}')
        for f in range(6): e(bload('buffer_load_dwordx4', R2[jl][f], r2, SRD['w2'], [sWQ, sU[8], sU[9]][jl], 32 * f))
    begin('P1')
    t0, t1, t2 = new(), new(), new()
    for r, val in ((sK[0], GK), (sK[1], GK), (sS[0], SC), (sS[1], SC), (sInv96, 1.0 / 96), (sEps, 1e-5)):
        e(salu('s_mov_b32', r, f2u(val)))
    rel = new()
    def ring_addr(dst, iota, extra):
        kk = v('v_lshrrev_b32', 1, iota, d=t0)
        e(valu('v_mov_b32', t1, RINGP)); v('v_mul_u32_u24', kk, t1, d=rel)
        v('v_and_b32', 1, kk, d=t0); v('v_lshl_add_u32', t0, 5, rel, d=rel)
        v('v_and_b32', 1, iota, d=t0); e(valu('v_mov_b32', t1, 121 * 16)); v('v_mad_u32_u24', t0, t1, rel, d=rel)
        e(valu('v_mov_b32', t1, 192)); v('v_mad_u32_u24', c8, t1, rel, d=rel)
        if extra is not None: v('v_add_u32', rel, extra, d=rel)
        v('v_add_u32', sWP, rel, d=dst)
    io = v('v_lshl_add_u32', b3, 1, q)
    ring_addr(vConv, io, None)
    prow = v('v_lshl_add_u32', b3, 1, b4)
    v('v_add_u32', 1, prow, d=io)
    ex = v('v_add_u32', 192, h16)
    ring_addr(vRes, io, ex)
    e(valu('v_mov_b32', t1, ROWB)); v('v_mad_u32_u24', prow, t1, h16, d=vSt)
    v('v_add_u32', sC0, c8, d=t0); e(valu('v_mov_b32', t1, 192)); v('v_mad_u32_u24', t0, t1, vSt, d=vSt)
    v('v_add_u32', B1T, h16, d=vB1)
    v('v_sub_u32', q, b2_, d=t0)
    v('v_lshl_add_u32', b3, 2, lo2, d=t1)
    v('v_lshl_add_u32', t0, 3, t1, d=t1)
    e(vcmp('v_cmp_gt_u32', 3, t0))
    v('v_mov_b32', 24, d=t2)
    e(valu('v_cndmask_b32', t1, t2, t1))
    v('v_lshlrev_b32', 4, t1, d=t1); v('v_add_u32', TAB, t1, d=vTab)
    v('v_add_u32', W1F, l16, d=vA); v('v_add_u32', 98304, l16, d=vB)
    dsel = v('v_lshlrev_b32', 2, b4); v('v_lshl_add_u32', b3, 1, dsel, d=dsel)
    v('v_bfe_u32', lane, 1, 1, d=t1); v('v_add_u32', dsel, t1, d=dsel)
    e(vcmp('v_cmp_eq_u32', b2_, b5))
    v('v_mov_b32', 8, d=t2); e(valu('v_cndmask_b32', dsel, t2, dsel))
    shl = v('v_and_b32', 1, lane); v('v_lshlrev_b32', 4, shl, d=shl)
    one = v('v_mov_b32', 0x3f80); v('v_lshlrev_b32', shl, one, d=one)
    MK = T[0:4]; ZR = T[4:8]
    v('v_mov_b32', 0xffff, d=t2); v('v_lshlrev_b32', shl, t2, d=t2)
    v('v_bfe_u32', lane, 1, 2, d=t0)
    for i in range(4):
        e(vcmp('v_cmp_eq_u32', i, t0)); e(valu('v_mov_b32', ZR[i], 0)); e(valu('v_cndmask_b32', MK[i], 0, t2))
    e(valu('v_mov_b32', t1, 400))
    v('v_min_u32', 35, lane, d=t0); v('v_mul_u32_u24', t0, t1, d=t0); v('v_add_u32', TAB + 384, t0, d=t0)
    e(dsw('ds_write_b128', t0, ZR))
    ta = v('v_lshrrev_b32', 3, tid); v('v_mul_u32_u24', ta, t1, d=ta); v('v_lshl_add_u32', c8, 4, ta, d=ta)
    v('v_add_u32', TAB, ta, d=ta)
    tb = v('v_lshrrev_b32', 3, l31); v('v_mul_u32_u24', tb, t1, d=tb); v('v_lshl_add_u32', c8, 4, tb, d=tb)
    e(salu('s_lshl_b32', sT0, sW3, 7)); e(salu('s_add_u32', sT0, sT0, TAB + 32 * 400))
    v('v_add_u32', sT0, tb, d=tb)
    e(salu('s_lshl_b32', sT0, sW3, 9)); e(salu('s_add_u32', sT0, sT0, B1T))
    tc = v('v_lshlrev_b32', 3, lane); v('v_add_u32', sT0, tc, d=tc)
    e(salu('s_lshl_b32', sT0, sW3, 7)); e(salu('s_add_u32', sT0, sT0, B2T))
    td = v('v_lshlrev_b32', 2, l31); v('v_add_u32', sT0, td, d=td)
    rr = v('v_bfe_u32', lane, 2, 2)
    hr = v('v_lshl_add_u32', b5, 2, rr)
    a1 = [V(248 + i) for i in range(4)]; an = [V(252), V(253)]
    v('v_lshlrev_b32', 7, hr, d=a1[0]); v('v_lshl_add_u32', b4, 5, a1[0], d=a1[0]); v('v_lshl_add_u32', lo2, 3, a1[0], d=a1[0])
    v('v_lshl_add_u32', b3, 6, a1[0], d=a1[0])
    v('v_xor_b32', 64, a1[0], d=a1[1])
    v('v_add_u32', RAW1, a1[0], d=a1[0]); v('v_add_u32', RAW1, a1[1], d=a1[1])
    v('v_add_u32', 36864, a1[0], d=a1[2]); v('v_add_u32', 36864, a1[1], d=a1[3])
    e(salu('s_mul_i32', sT0, sW, 12288))
    v('v_add_u32', sT0, a1[0], d=an[0]); v('v_add_u32', sT0, a1[1], d=an[1])
    begin('P2')
    for k in range(4):
        D = X[0][4 * k:4 * k + 4]
        v('v_lshl_or_b32', DW[k], 16, DW[k], d=DW[k])
        for i in range(4): e(valu('v_and_b32', D[i], MK[i], DW[k]))
        e(dsw('ds_write_b128', ta if k < 3 else tb, D, 128 * k if k < 3 else 0))
    for t in range(3): v('v_lshlrev_b32', shl, G[t], d=G[t])
    BG = [W2S[8 * t:8 * t + 8] for t in range(3)]
    for i in range(8):
        e(vcmp('v_cmp_eq_u32', i, dsel))
        if i == 0:
            PB = T[8:10]
            v('v_lshlrev_b32', 16, b1v, d=PB[0]); v('v_and_b32', 0xffff0000, b1v, d=PB[1])
        e(valu('v_cndmask_b32', IDF[i], 0, one))
        for t in range(3): e(valu('v_cndmask_b32', BG[t][i], 0, G[t]))
    e(pk('v_pk_mul_f32', PB, PB, sS))
    e(dsw('ds_write_b64', tc, PB))
    v('v_lshlrev_b32', 16, g2, d=g2); v('v_lshlrev_b32', 16, b2v, d=b2v); v('v_mul_f32', g2, b2v, d=g2)
    e(dsw('ds_write_b32', td, g2))
    e(salu('s_add_u32', sP0, sWP, 32)); e(salu('s_add_u32', sP1, sWP, RINGP))
    e(salu('s_mov_b32', sT2, sRB)); e(salu('s_mov_b32', sSt, 0x80000000))
    begin('conv')
    CB = [CS, Z]
    def crd(g, m):
        B = CB[g % 2]
        return [dsr('ds_read_b128', B[8 * m:8 * m + 4], vTab, (m * 12 + g) * 400), dsr('ds_read_b128', B[8 * m + 4:8 * m + 8], vConv, m * 192 + 16 * g)]
    e(wait_tag('x0'))
    e(mark('xarr'))
    for g in range(2):
        for m in range(3): cur.extend(crd(g, m))
    for g in range(12):
        B = CB[g % 2]; d = CV[4 * g:4 * g + 4]
        for m in range(3):
            e(mfma(d, B[8 * m:8 * m + 4], B[8 * m + 4:8 * m + 8], 0 if m == 0 else d, big=False))
            if m == 2 and g < 11: e(wait_for(CB[(g + 1) % 2][0:8]))
            if g < 10: cur.extend(crd(g + 2, m))
    e(mark('conv'))
    begin('ln')
    for g in range(12): cur.extend(ln_stats(g))
    cur.extend(ln_final()); cur.extend(ln_norm()); cur.extend(ln_cvt()); cur.extend(rotate(vConv))
    begin('tr')
    NRS = CS[0:8]
    assert NR == [(j, 5) for j in range(4, 12)]
    for jo in range(2):
        for u in range(2):
            e(dsr('ds_read_b64_tr_b16', NRS[4 * jo + 2 * u:4 * jo + 2 * u + 2], an[jo], 2 * 12288 + (80 + 8 * u) * 128))
    for (j, sg), r in RES.items():
        jj, jo = j // 2, j % 2
        for u in range(2):
            e(dsr('ds_read_b64_tr_b16', r[2 * u:2 * u + 2], a1[jo + 2 * (jj >= 3)], (jj % 3) * 12288 + (16 * sg + 8 * u) * 128))
    begin('fold')
    DD = [T, X[0]]
    prs = [(jl, t) for jl in range(3) for t in range(3)]
    def cvts(n):
        jl, t = prs[n]; D = DD[n % 2]
        return [valu('v_cvt_pk_bf16_f32', R2[jl][2 * t + i // 4][i % 4], D[2 * i], D[2 * i + 1]) for i in range(8)]
    for n, (jl, t) in enumerate(prs):
        D = DD[n % 2]
        c = cvts(n - 1) if n else []
        e(mfma(D, R2[jl][2 * t], BG[t][0:4], 0)); cur.extend(c[:4])
        e(mfma(D, R2[jl][2 * t + 1], BG[t][4:8], D)); cur.extend(c[4:])
    cur.extend(cvts(8))
    begin('w1f')
    e(salu('s_lshl_b32', sT0, sW, 11)); e(salu('s_add_u32', sT1, sWQ, W2F - W1F))
    wa = v('v_add_u32', sT0, vA, d=SPARE[2]); w2w = v('v_add_u32', sT1, vA, d=SPARE[3])
    for jo in range(2): e(dsw('ds_write_b128', wa, NRS[4 * jo:4 * jo + 4], 1024 * jo))
    cur.extend(b1_reads(0))
    begin('w2w')
    for jl in range(3):
        for k in range(2):
            for t in range(3): e(dsw('ds_write_b128', w2w, R2[jl][2 * t + k], jl * 6144 + (3 * k + t) * 1024))
    e(salu('s_add_u32', sT1, sWP, 2 * RINGP))
    begin('pfa')
    e(valu('v_subrev_u32', SPARE[3], W1F, vA))
    e(valu('v_lshrrev_b32', vTmp, 8, SPARE[3]))
    e(valu('v_and_b32', SPARE[3], 255, SPARE[3]))
    e(valu('v_lshlrev_b32', SPARE[3], 3, SPARE[3]))
    e(valu('v_mul_u32_u24', vTmp, ROWB, vTmp))
    e(salu('s_sub_u32', sT0, sBase, 64))
    e(valu('v_add3_u32', SPARE[3], SPARE[3], vTmp, sT0))
    S_ = seg
    xs = S_['x0'] + S_['x1'] + S_['x2']
    w1s = sum((S_[f'w1{j}'] for j in range(6)), [])
    w2s = sum((S_[f'w2{j}'] for j in range(3)), [])
    pf = [] if DBG.get('nopf') else S_['pf']
    o = list(S_['P0'])
    B1 = [wait_tag('raw1'), barrier(), mark('B1')]
    if not DBG.get('worder'):
        o += pf + S_['small'] + xs + S_['P1'] + w1s[:27] + S_['P2'] + w1s[27:] + w2s + [mark('issued'), barrier()]
        o += S_['conv'] + B1
        o += merge(S_['ln'] + S_['fold'], S_['tr'], 6, 4) + S_['w1f'] + [barrier(), mark('B2')] + S_['w2w'] + [barrier()]
    else:
        o += pf + S_['small'] + S_['x0'] + w1s + S_['P1'] + w2s + S_['x1'] + S_['x2'] + S_['P2'] + [mark('issued')] + B1
        o += merge(S_['fold'], S_['tr'], 3, 4) + S_['w1f'] + [barrier(), mark('B2')] + S_['w2w']
        o += S_['conv'] + S_['ln'] + [barrier()]
    o += S_['pfa']
    o.append(mark('end'))
    return o

def build(peel=False):
    o = prologue()
    if peel:
        o += body(first=True)
        o.append(salu('s_mov_b32', sCnt, 6))
    else:
        o.append(salu('s_mov_b32', sCnt, 8))
    o.append(raw("  .p2align 6"))
    o.append(label('L_loop'))
    b = body()
    o += b
    o += [salu('s_sub_u32', sCnt, sCnt, 1), scmp('s_cmp_lg_u32', sCnt, 0), branch('s_cbranch_scc1', 'L_loop')]
    if peel: o += body(last=True)
    o += tail()
    o.append(label('L_end'))
    o.append(endpgm())
    o = passes.insert_waits(o)
    o = passes.fix_hazards(o)
    return o

HEAD = """; Kernarg layout (80 bytes, ptrs only, base s[0:1]): x, dw, w1, b1, w2, b2, gamma, out, debug, ws
; @launch grid=(256,1,1) block=(256,1,1) lds=163840
.amdgcn_target "amdgcn-amd-amdhsa--gfx950"
.text
.globl {n}_kernel
.p2align 8
.type {n}_kernel,@function
{n}_kernel:
"""
FOOT = """.section .rodata,"a"
.p2align 6
.amdhsa_kernel {n}_kernel
  .amdhsa_next_free_vgpr 512
  .amdhsa_next_free_sgpr 102
  .amdhsa_accum_offset 256
  .amdhsa_group_segment_fixed_size 0
  .amdhsa_kernarg_size 80
  .amdhsa_user_sgpr_count 2
  .amdhsa_user_sgpr_kernarg_segment_ptr 1
  .amdhsa_system_sgpr_workgroup_id_x 1
.end_amdhsa_kernel
"""
def emit(ins):
    return HEAD.format(n=NAME) + "\n".join(str(i) for i in ins) + "\n" + FOOT.format(n=NAME)

if __name__ == '__main__':
    peel = '--peel' in sys.argv
    ins = build(peel)
    out = [a for a in sys.argv[1:] if not a.startswith('--')]
    path = out[0] if out else f"/code/{NAME}.s"
    if '--prof' in sys.argv:
        import prof, json
        marks = ('M1', 'M2') if not DBG.get('coarse') else (' 0 M1',)
        if DBG.get('fine'): marks = tuple(f" {s_} {p_}" for s_ in (0, 1, 2, 3, 6, 11) for p_ in ('M1', 'Pa', 'M2', 'Pb')) + (' 4 M1', ' 7 M1')
        a = next(n for n, i in enumerate(ins) if i.cls == 'label' and i.src[0] == 'L_loop')
        b = next(n for n, i in enumerate(ins) if i.cls == 'branch' and i.src[0] == 'L_loop')
        tr = []; passes.cost_sim(ins[a:b + 1], tr)
        tt = [t for t, i in tr if i.cls == 'raw' and i.text.startswith('  ; ---- step') and i.text.endswith(marks)] + [tr[-3][0]]
        pi, np_, nl = prof.instrument(ins, marks)
        if not DBG.get('noalign'): pi = passes.align8(pi, verbose=True)
        open(path, 'w').write(emit(pi))
        json.dump({'pro': np_, 'loop': nl, 'iters': 6 if peel else 8, 'est': [y - x for x, y in zip(tt, tt[1:])]}, open(path[:-2] + '.json', 'w'))
    else:
        if not DBG.get('noalign'): ins = passes.align8(ins, verbose=True)
        open(path, 'w').write(emit(ins))
    a = next(n for n, i in enumerate(ins) if i.cls == 'label' and i.src[0] == 'L_loop')
    b = next(n for n, i in enumerate(ins) if i.cls == 'branch' and i.src[0] == 'L_loop')
    print("insts", len(ins), "prologue cost", passes.cost_sim(ins[:a]), "loop cost", passes.cost_sim(ins[a:b + 1]), "tail", passes.cost_sim(ins[b + 1:]))
    print("auto waits in loop:", sum(1 for i in ins[a:b] if i.note == 'auto'), "hazard nops in loop:", sum(1 for i in ins[a:b] if i.note and 'hazard' in i.note))
```
